```python
import torch

def _softmax(x, axis=-1):
    return torch.softmax(x, dim=axis)
def _gelu(x):
    return torch.nn.functional.gelu(x, approximate="tanh")
def _silu(x):
    return torch.nn.functional.silu(x)
def _sigmoid(x):
    return torch.sigmoid(x)
def _layernorm(x, axis=-1, eps=1e-5):
    m = x.mean(dim=axis, keepdim=True)
    v = x.var(dim=axis, keepdim=True, unbiased=False)
    return (x - m) / torch.sqrt(v + eps)
def _scatter_add(tgt, idx, src, axis=0):
    return tgt.clone().index_add_(axis, idx, src)
def _segment_sum(src, seg, n):
    out = torch.zeros((n,) + src.shape[1:], dtype=src.dtype)
    return out.index_add_(0, seg, src)
def _pad(x, pw):
    flat = tuple(v for pair in reversed(pw) for v in pair)
    return torch.nn.functional.pad(x, flat)

kernel_name = 'interleave_layers__gqa_block_cached__glu_gated_glu__decode'

def setup_inputs():

    _w = (lambda a: (lambda t: t.to(torch.bfloat16) if t.is_floating_point() else t)(torch.as_tensor(a)))
    def _A_setup():
        B, Sq, D = 1, 1, 512
        Hq, Hkv, Sk, Dh = 32, 32, 16384, 128
        assert Hq % Hkv == 0, (Hq, Hkv)
        return {
            "x": _w((lambda *s: torch.randn(*s, dtype=torch.bfloat16) * 0.05)(B, Sq, D)),
            "k_cache": _w((lambda *s: torch.randn(*s, dtype=torch.bfloat16) * 1.6)(B, Hkv, Sk, Dh)),
            "v_cache": _w((lambda *s: torch.randn(*s, dtype=torch.bfloat16) * 1.6)(B, Hkv, Sk, Dh)),
            "wq": _w((lambda *s: torch.randn(*s, dtype=torch.bfloat16) * 1.6)(D, Hq * Dh) * (D ** -0.5)),
            "wo": _w((lambda *s: torch.randn(*s, dtype=torch.bfloat16) * 1.6)(Hq * Dh, D) * ((Hq * Dh) ** -0.5)),
        }
    _A_in = _A_setup()

    def _B_setup():
        B, S, D, F = 1, 1, 512, 1376
        return {
            "x": _w((lambda *s: torch.randn(*s, dtype=torch.bfloat16) * 0.05)(B, S, D)),
            "w_gate": _w((lambda *s: torch.randn(*s, dtype=torch.bfloat16) * 0.05)(D, F)),
            "w_up": _w((lambda *s: torch.randn(*s, dtype=torch.bfloat16) * 0.05)(D, F)),
            "w_down": _w((lambda *s: torch.randn(*s, dtype=torch.bfloat16) * 0.05)(F, D)),
        }
    _B_in = _B_setup()

    return {
        "A_x": _A_in["x"],
        "A_k_cache": _A_in["k_cache"],
        "A_v_cache": _A_in["v_cache"],
        "A_wq": _A_in["wq"],
        "A_wo": _A_in["wo"],
        "B_x": _B_in["x"],
        "B_w_gate": _B_in["w_gate"],
        "B_w_up": _B_in["w_up"],
        "B_w_down": _B_in["w_down"],
    }

def reference(A_x, A_k_cache, A_v_cache, A_wq, A_wo, B_x, B_w_gate, B_w_up, B_w_down):
    def _A_ref(x, k_cache, v_cache, wq, wo):
        B, Sq, D = x.shape
        Hq, Dh = 32, 128
        Hkv = k_cache.shape[1]
        rep = Hq // Hkv
        q = (lambda x, *d: x.permute(*d))((x @ wq).reshape(B, Sq, Hq, Dh), 0, 2, 1, 3)
        k = (lambda x, n, axis: torch.repeat_interleave(x, n, dim=axis))(k_cache, rep, axis=1)
        v = (lambda x, n, axis: torch.repeat_interleave(x, n, dim=axis))(v_cache, rep, axis=1)
        scores = torch.einsum("bhqd,bhkd->bhqk", q, k) * (Dh ** -0.5)
        p = _softmax(scores, axis=-1)
        o = torch.einsum("bhqk,bhkd->bhqd", p, v)
        return (lambda x, *d: x.permute(*d))(o, 0, 2, 1, 3).reshape(B, Sq, Hq * Dh) @ wo

    def _B_ref(x, w_gate, w_up, w_down):
        g = torch.einsum("bsd,df->bsf", x, w_gate)
        u = torch.einsum("bsd,df->bsf", x, w_up)
        h = _sigmoid(g) * u
        return torch.einsum("bsf,fd->bsd", h, w_down)

    x = A_x
    x = x + _A_ref(_layernorm(x, axis=-1), A_k_cache, A_v_cache, A_wq, A_wo)
    x = x + _B_ref(_layernorm(x, axis=-1), B_w_gate, B_w_up, B_w_down)
    x = x + _A_ref(_layernorm(x, axis=-1), A_k_cache, A_v_cache, A_wq, A_wo)
    x = x + _B_ref(_layernorm(x, axis=-1), B_w_gate, B_w_up, B_w_down)
    return x
```

```python
import sys, math

NAME = "interleave_layers__gqa_block_cached__glu_gated_glu__decode_kernel"

class Cfg:
    diag = False
    nt_k = True
    nt_v = True
    budget = 1 << 20


def gen(cfg):
    L = []
    def A(s):
        for line in s.split("\n"):
            L.append("    " + line if not line.endswith(":") else line)
    lab_id = [0]
    def newlab(p="L"):
        lab_id[0] += 1
        return "%s_%d" % (p, lab_id[0])

    NTK = " nt" if cfg.nt_k else ""
    NTV = " nt" if cfg.nt_v else ""

    vTid, vLane, vVoff, vTile = 0, 1, 2, 3
    vX = 4
    vPw, vPa, vRoff, vLs, vM = 8, 9, 10, 11, 12
    vT0, vT1, vT2 = 13, 14, 15
    vS = 16
    vAcc = 32
    vQ = 40
    vD = 48
    vB = 64
    vK = 112
    NKV = 9
    NKA = 16
    NKL = 7
    NVL = 2
    TMP = 16

    sWv, sH, sS = 3, 4, 5
    sK, sV, sWS, sWQ, sWO, sWG, sWU, sWD, sXi, sOut, sDbg = 8, 12, 16, 20, 24, 28, 32, 36, 40, 44, 48
    sMev, sMc0, sMlo, sMhi = 52, 54, 56, 58
    sKV, sOff, sLay, sSlot, sCnt, sBud, sC1, sOne = 60, 61, 62, 63, 64, 65, 66, 67
    sT0, sT1, sGb, sRb, sF0, sNown, sOneHi = 68, 69, 70, 71, 72, 73, 74
    sWqo, sWoo, sGuo, sDno = 75, 76, 77, 78
    sEx = 80
    sTs = 82
    sM0 = 84
    sArg = 86

    QP, QX, OP, ML, WOP, GUP, GUX, DNP = 0, 1024, 1280, 1792, 2048, 2304, 3328, 3584
    LDS_OM, LDS_HM, LDS_Q = 8192, 8704, 8960
    LDS_TILES = 12288
    LDS_TOTAL = LDS_TILES + 4 * 9 * 4096

    def srd(s, lo, hi, nbytes):
        A("s_mov_b32 s%d, s%d\ns_mov_b32 s%d, s%d\ns_mov_b32 s%d, 0x%x\ns_mov_b32 s%d, 0x00020000" %
          (s, lo, s + 1, hi, s + 2, nbytes, s + 3))
    def SR(s):
        return "s[%d:%d]" % (s, s + 3)
    def V(a, n=1):
        return "v%d" % a if n == 1 else "v[%d:%d]" % (a, a + n - 1)
    def AG(a, n):
        return "a[%d:%d]" % (a, a + n - 1)

    stamp_n = [0]
    def stamp(name):
        if not cfg.diag:
            return
        i = stamp_n[0]; stamp_n[0] += 1
        A("s_memrealtime s[%d:%d]" % (sTs, sTs + 1))
        A("s_waitcnt lgkmcnt(0)")
        A("v_mov_b32 v%d, s%d" % (vT2, sTs))
        A("s_lshl_b32 s%d, s2, 2\ns_add_u32 s%d, s%d, s%d\ns_lshl_b32 s%d, s%d, 8" % (sTs, sTs, sTs, sWv, sTs, sTs))
        A("s_lshr_b32 s%d, s%d, 5\ns_add_u32 s%d, s%d, s%d" % (sTs + 1, sLay, sTs, sTs, sTs + 1))
        A("s_add_u32 s%d, s%d, 0x%x" % (sTs, sTs, (4 << 20) + i * 4))
        A("s_mov_b64 s[%d:%d], exec\ns_mov_b64 exec, 1" % (sEx + 8, sEx + 9))
        A("buffer_store_dword v%d, off, %s, s%d" % (vT2, SR(sWS), sTs))
        A("s_mov_b64 exec, s[%d:%d]" % (sEx + 8, sEx + 9))
        cfg.stamp_names.append(name)

    def wave_red(op, v, t):
        for m in ["quad_perm:[1,0,3,2]", "quad_perm:[2,3,0,1]", "row_half_mirror", "row_mirror"]:
            A("s_nop 1")
            A("v_%s_f32_dpp v%d, v%d, v%d %s row_mask:0xf bank_mask:0xf" % (op, v, v, v, m))
        for sw in ["v_permlane16_swap_b32", "v_permlane32_swap_b32"]:
            A("v_mov_b32 v%d, v%d" % (t, v))
            A("s_nop 1")
            A("%s v%d, v%d" % (sw, t, v))
            A("v_%s_f32 v%d, v%d, v%d" % (op, v, t, v))

    def red4(a):
        A("s_nop 2")
        A("v_permlane16_swap_b32 v%d, v%d" % (a, a + 1))
        A("v_permlane16_swap_b32 v%d, v%d" % (a + 2, a + 3))
        A("v_add_f32 v%d, v%d, v%d" % (a, a, a + 1))
        A("v_add_f32 v%d, v%d, v%d" % (a + 2, a + 2, a + 3))
        A("s_nop 1")
        A("v_permlane32_swap_b32 v%d, v%d" % (a, a + 2))
        A("v_add_f32 v%d, v%d, v%d" % (a, a, a + 2))

    def rnd_bf16(v, t=None):
        A("v_cvt_pk_bf16_f32 v%d, v%d, v%d" % (v, v, v))
        A("v_lshlrev_b32 v%d, 16, v%d" % (v, v))

    def check_regs(regs, t):
        regs = list(regs)
        A("v_max_u32 v%d, v%d, v%d" % (t, regs[0], regs[1]) if len(regs) > 1 else "v_mov_b32 v%d, v%d" % (t, regs[0]))
        i = 2
        while i < len(regs):
            if i + 1 < len(regs):
                A("v_max3_u32 v%d, v%d, v%d, v%d" % (t, t, regs[i], regs[i + 1])); i += 2
            else:
                A("v_max_u32 v%d, v%d, v%d" % (t, t, regs[i])); i += 1
        A("v_cmp_eq_u32 vcc, -1, v%d" % t)

    def poll(emit_loads, regs, t, first_wait=None):
        lp, done = newlab("POLL"), newlab("PDONE")
        if first_wait is not None:
            A("s_waitcnt vmcnt(%d)" % first_wait)
            check_regs(regs, t)
            A("s_cbranch_vccz %s" % done)
        A(lp + ":")
        emit_loads()
        A("s_waitcnt vmcnt(0)")
        check_regs(regs, t)
        A("s_cbranch_vccz %s" % done)
        A("s_cmp_eq_u32 s%d, 0\ns_cbranch_scc1 %s\ns_sub_u32 s%d, s%d, 1\ns_branch %s" % (sBud, done, sBud, sBud, lp))
        A(done + ":")

    hdr = []
    hdr.append("; @launch grid=(256,1,1) block=(256,1,1) lds=%d" % LDS_TOTAL)
    hdr.append('.amdgcn_target "amdgcn-amd-amdhsa--gfx950"')
    hdr.append(".text\n.globl %s\n.p2align 8\n.type %s,@function\n%s:" % (NAME, NAME, NAME))

    A("s_cmp_ge_u32 s2, 256\ns_cbranch_scc1 L_END")
    A("s_load_dwordx16 s[84:99], s[0:1], 0")
    A("s_load_dwordx8 s[72:79], s[0:1], 64")
    A("v_and_b32 v%d, 63, v0" % vLane)
    A("v_lshrrev_b32 v%d, 6, v0" % vT0)
    A("s_and_b32 s%d, s2, 31\ns_lshr_b32 s%d, s2, 5" % (sH, sS))
    A("v_readfirstlane_b32 s%d, v%d" % (sWv, vT0))
    A("s_waitcnt lgkmcnt(0)")
    srd(sXi, 84, 85, 1024)
    srd(sK, 86, 87, 128 << 20)
    srd(sV, 88, 89, 128 << 20)
    srd(sWQ, 90, 91, 4 << 20)
    srd(sWO, 92, 93, 4 << 20)
    srd(sWG, 96, 97, 512 * 2752)
    srd(sWU, 98, 99, 512 * 2752)
    srd(sWD, 72, 73, 1376 * 1024)
    srd(sOut, 74, 75, 1024)
    srd(sDbg, 76, 77, 256)
    srd(sWS, 78, 79, (8 << 20) if cfg.diag else (2 << 20))
    A("s_mov_b32 s%d, 0x55555555\ns_mov_b32 s%d, 0x55555555" % (sMev, sMev + 1))
    A("s_mov_b32 s%d, 0x00010001\ns_mov_b32 s%d, 0x00010001" % (sMc0, sMc0 + 1))
    A("s_mov_b32 s%d, 0x00ff00ff\ns_mov_b32 s%d, 0x00ff00ff" % (sMlo, sMlo + 1))
    A("s_mov_b32 s%d, 0xff00ff00\ns_mov_b32 s%d, 0xff00ff00" % (sMhi, sMhi + 1))
    c1 = (128 ** -0.5) * math.log2(math.e)
    import struct
    fb = lambda f: struct.unpack("<I", struct.pack("<f", f))[0]
    A("s_mov_b32 s%d, 0x%08x" % (sC1, fb(c1)))
    A("s_mov_b32 s%d, 0x3f80\ns_mov_b32 s%d, 0x3f800000" % (sOne, sOneHi))
    A("s_mov_b32 s%d, %d" % (sBud, cfg.budget))
    A("s_mov_b32 s%d, 0" % sLay)
    A("s_lshl_b32 s%d, s2, 13" % sSlot)
    A("s_lshl_b32 s%d, s%d, 13" % (sGb, sH))
    A("s_lshl_b32 s%d, s%d, 18" % (sRb, sS))
    A("s_lshl_b32 s%d, s%d, 22\ns_lshl_b32 s%d, s%d, 19\ns_add_u32 s%d, s%d, s%d" % (sKV, sH, sT0, sS, sKV, sKV, sT0))
    A("s_lshl_b32 s%d, s%d, 12\ns_add_u32 s%d, s%d, s%d" % (sT0, sWv, sKV, sKV, sT0))
    A("s_mul_i32 s%d, s%d, 43\ns_add_u32 s%d, s%d, 43\ns_lshr_b32 s%d, s%d, 3\ns_lshr_b32 s%d, s%d, 3" % (sT0, sH, sT1, sT0, sT0, sT0, sT1, sT1))
    A("s_sub_u32 s%d, s%d, s%d\ns_lshl_b32 s%d, s%d, 3\ns_lshl_b32 s%d, s%d, 3" % (sNown, sT1, sT0, sNown, sNown, sF0, sT0))
    A("s_lshl_b32 s%d, s%d, 6\ns_lshl_b32 s%d, s%d, 4\ns_add_u32 s%d, s%d, s%d" % (sT0, sS, sT1, sWv, sT0, sT0, sT1))
    A("s_lshl_b32 s%d, s%d, 13\ns_lshl_b32 s%d, s%d, 8\ns_add_u32 s%d, s%d, s%d" % (sWqo, sT0, sT1, sH, sWqo, sWqo, sT1))
    A("s_mul_i32 s%d, s%d, 2752\ns_lshl_b32 s%d, s%d, 1\ns_add_u32 s%d, s%d, s%d" % (sGuo, sT0, sT1, sF0, sGuo, sGuo, sT1))
    A("s_lshl_b32 s%d, s%d, 17\ns_lshl_b32 s%d, s%d, 15\ns_add_u32 s%d, s%d, s%d\ns_lshl_b32 s%d, s%d, 7\ns_add_u32 s%d, s%d, s%d" %
      (sWoo, sH, sT1, sWv, sWoo, sWoo, sT1, sT1, sS, sWoo, sWoo, sT1))
    A("s_lshl_b32 s%d, s%d, 2\ns_add_u32 s%d, s%d, s%d\ns_lshl_b32 s%d, s%d, 10\ns_lshl_b32 s%d, s%d, 7\ns_add_u32 s%d, s%d, s%d" %
      (sDno, sWv, sDno, sDno, sF0, sDno, sDno, sT1, sS, sDno, sDno, sT1))

    vg, vc = vT0, vT1
    A("v_lshrrev_b32 v%d, 4, v%d\nv_and_b32 v%d, 15, v%d" % (vg, vLane, vc, vLane))
    A("v_lshlrev_b32 v%d, 9, v%d\nv_lshl_add_u32 v%d, v%d, 4, v%d" % (vVoff, vg, vVoff, vc, vVoff))
    A("s_mul_i32 s%d, s%d, %d\ns_add_u32 s%d, s%d, %d" % (sT1, sWv, 9 * 4096, sT1, sT1, LDS_TILES))
    A("v_lshlrev_b32 v%d, 4, v%d\nv_add_u32 v%d, s%d, v%d" % (vTile, vLane, vTile, sT1, vTile))
    A("s_lshl_b32 s%d, s%d, 11" % (sT1, sWv))
    A("v_lshlrev_b32 v%d, 4, v%d\nv_add_u32 v%d, s%d, v%d" % (vPw, vg, vPw, sT1, vPw))
    A("s_lshl_b32 s%d, s%d, 6" % (sT1, sWv))
    A("v_lshlrev_b32 v%d, 13, v%d\nv_lshl_add_u32 v%d, v%d, 2, v%d\nv_add_u32 v%d, s%d, v%d" % (vRoff, vg, vRoff, vc, vRoff, vRoff, sT1, vRoff))

    stamp("start")
    pz = vS
    for i in range(4):
        A("v_mov_b32 v%d, -1" % (pz + i))
    A("v_lshlrev_b32 v%d, 4, v0" % vT2)
    A("buffer_store_dwordx4 %s, v%d, %s, s%d offen sc1" % (V(pz, 4), vT2, SR(sWS), sSlot))
    A("s_add_u32 s%d, s%d, 4096" % (sT1, sSlot))
    A("buffer_store_dwordx4 %s, v%d, %s, s%d offen sc1" % (V(pz, 4), vT2, SR(sWS), sT1))
    A("v_lshlrev_b32 v%d, 3, v%d" % (vT2, vg))
    A("s_lshl_b32 s%d, s%d, 1" % (sT1, sT0))
    A("buffer_load_dwordx2 %s, v%d, %s, s%d offen" % (V(vD, 2), vT2, SR(sXi), sT1))

    def wq_voff(dst):
        A("v_lshrrev_b32 v%d, 4, v%d\nv_lshlrev_b32 v%d, 15, v%d\nv_and_b32 v%d, 15, v%d\nv_lshl_add_u32 v%d, v%d, 4, v%d" %
          (dst, vLane, dst, dst, vT2, vLane, dst, vT2, dst))
    def wq_load(n, voff):
        A("s_add_u32 s%d, s%d, %d" % (sT1, sWqo, n * 8192))
        A("buffer_load_dwordx4 %s, v%d, %s, s%d offen" % (V(vB + 32 + 4 * n, 4), voff, SR(sWQ), sT1))
    wq_voff(vD + 2)
    for n in range(4):
        wq_load(n, vD + 2)

    vKoff = vD + 3
    A("v_lshrrev_b32 v%d, 1, v%d\nv_and_b32 v%d, 7, v%d\nv_lshlrev_b32 v%d, 8, v%d" % (vKoff, vLane, vKoff, vKoff, vKoff, vKoff))
    A("v_lshrrev_b32 v%d, 4, v%d\nv_lshl_add_u32 v%d, v%d, 5, v%d" % (vT2, vLane, vKoff, vT2, vKoff))
    A("v_and_b32 v%d, 1, v%d\nv_lshl_add_u32 v%d, v%d, 4, v%d" % (vT2, vLane, vKoff, vT2, vKoff))
    KIMM = [0, 128, 2048, 2176]
    def kreg(t, j):
        if t < NKA:
            return AG(t * 16 + j * 4, 4)
        return V(vK + (t - NKA) * 16 + j * 4, 4)
    def k_load(t):
        A("s_add_u32 s%d, s%d, %d" % (sOff, sKV, t * 16384))
        for j in range(4):
            A("buffer_load_dwordx4 %s, v%d, %s, s%d offen offset:%d%s" % (kreg(t, j), vKoff, SR(sK), sOff, KIMM[j], NTK))
    NB1 = 12
    for t in range(NB1):
        k_load(t)
    A("s_waitcnt vmcnt(%d)" % (NB1 * 4))
    A("s_barrier")
    l1 = newlab()
    A("s_cmp_lg_u32 s%d, 0\ns_cbranch_scc1 %s" % (sWv, l1))
    A("v_mov_b32 v%d, 1\ns_mov_b64 exec, 1" % vT2)
    A("buffer_atomic_add v%d, off, %s, 0 sc1" % (vT2, SR(sDbg)))
    A("s_mov_b64 exec, -1")
    A(l1 + ":")
    A("v_lshlrev_b32 v%d, 16, v%d\nv_and_b32 v%d, 0xffff0000, v%d" % (vX, vD, vX + 1, vD))
    A("v_lshlrev_b32 v%d, 16, v%d\nv_and_b32 v%d, 0xffff0000, v%d" % (vX + 2, vD + 1, vX + 3, vD + 1))

    def p1_colsum(W, accC):
        for n in range(4):
            for k in range(4):
                w = W + 4 * n + k
                if n == 0:
                    A("v_dot2_f32_bf16 v%d, v%d, s%d, 0" % (accC + 2 * k, w, sOne))
                    A("v_dot2_f32_bf16 v%d, v%d, s%d, 0" % (accC + 2 * k + 1, w, sOneHi))
                else:
                    A("v_dot2_f32_bf16 v%d, v%d, s%d, v%d" % (accC + 2 * k, w, sOne, accC + 2 * k))
                    A("v_dot2_f32_bf16 v%d, v%d, s%d, v%d" % (accC + 2 * k + 1, w, sOneHi, accC + 2 * k + 1))
        red4(accC); red4(accC + 4)
        lds_col_addr(vT0)
        A("ds_write_b32 v%d, v%d offset:512" % (vT0, accC))
        A("ds_write_b32 v%d, v%d offset:528" % (vT0, accC + 4))

    def lds_col_addr(dst):
        A("v_and_b32 v%d, 15, v%d\nv_lshlrev_b32 v%d, 5, v%d\nv_lshrrev_b32 v%d, 4, v%d\nv_lshl_add_u32 v%d, v%d, 2, v%d" %
          (dst, vLane, dst, dst, vT2, vLane, dst, vT2, dst))
        A("s_lshl_b32 s%d, s%d, 11\nv_add_u32 v%d, s%d, v%d" % (sT1, sWv, dst, sT1, dst))

    def p1_gemv(W, xoff, kind):
        accA, xm = TMP, TMP + 8
        A("v_lshrrev_b32 v%d, 4, v%d\nv_lshlrev_b32 v%d, 4, v%d" % (vT0, vLane, vT0, vT0))
        A("s_lshl_b32 s%d, s%d, 6\ns_add_u32 s%d, s%d, s%d\ns_add_u32 s%d, s%d, s%d" % (sT1, sWv, sT1, sT1, sSlot, sT1, sT1, sLay))
        A("s_mov_b64 exec, s[%d:%d]" % (sMc0, sMc0 + 1))
        A("buffer_store_dwordx4 %s, v%d, %s, s%d offen offset:%d sc1" % (V(vX, 4), vT0, SR(sWS), sT1, xoff))
        A("s_mov_b64 exec, -1")
        for n in range(4):
            A("v_cvt_pk_bf16_f32 v%d, v%d, 0" % (xm + 2 * n, vX + n))
            A("v_and_b32 v%d, 0xffff0000, v%d" % (xm + 2 * n + 1, vX + n))
        for n in range(4):
            for k in range(4):
                w = W + 4 * n + k
                c0 = "0" if n == 0 else "v%d" % (accA + 2 * k)
                c1_ = "0" if n == 0 else "v%d" % (accA + 2 * k + 1)
                A("v_dot2_f32_bf16 v%d, v%d, v%d, %s" % (accA + 2 * k, w, xm + 2 * n, c0))
                A("v_dot2_f32_bf16 v%d, v%d, v%d, %s" % (accA + 2 * k + 1, w, xm + 2 * n + 1, c1_))
        red4(accA); red4(accA + 4)
        lds_col_addr(vT0)
        A("ds_write_b32 v%d, v%d" % (vT0, accA))
        A("ds_write_b32 v%d, v%d offset:16" % (vT0, accA + 4))
        A("s_waitcnt lgkmcnt(0)\ns_barrier")
        skip = newlab()
        r = TMP
        A("s_add_u32 s%d, s%d, s%d" % (sT1, sSlot, sLay))
        if kind == "q":
            A("s_cmp_ge_u32 s%d, 2\ns_cbranch_scc1 %s" % (sWv, skip))
            A("v_lshlrev_b32 v%d, 2, v0" % vT0)
            for w in range(4):
                A("ds_read_b32 v%d, v%d offset:%d" % (r + w, vT0, w * 2048))
                A("ds_read_b32 v%d, v%d offset:%d" % (r + 4 + w, vT0, w * 2048 + 512))
            A("v_lshlrev_b32 v%d, 3, v0" % vT0)
            A("s_waitcnt lgkmcnt(0)")
            A("v_add_f32 v%d, v%d, v%d\nv_add_f32 v%d, v%d, v%d\nv_add_f32 v%d, v%d, v%d" % (r, r, r + 1, r + 2, r + 2, r + 3, r + 8, r, r + 2))
            A("v_add_f32 v%d, v%d, v%d\nv_add_f32 v%d, v%d, v%d\nv_add_f32 v%d, v%d, v%d" % (r + 4, r + 4, r + 5, r + 6, r + 6, r + 7, r + 9, r + 4, r + 6))
            A("buffer_store_dwordx2 %s, v%d, %s, s%d offen offset:%d sc1" % (V(r + 8, 2), vT0, SR(sWS), sT1, QP))
        else:
            A("s_cmp_ge_u32 s%d, 1\ns_cbranch_scc1 %s" % (sWv, skip))
            A("v_lshlrev_b32 v%d, 2, v0" % vT0)
            offs = [0, 256, 512, 768]
            for qn in range(4):
                for w in range(4):
                    A("ds_read_b32 v%d, v%d offset:%d" % (r + 4 * qn + w, vT0, w * 2048 + offs[qn]))
            A("v_lshlrev_b32 v%d, 4, v0" % vT0)
            A("s_waitcnt lgkmcnt(0)")
            for qn in range(4):
                b = r + 4 * qn
                A("v_add_f32 v%d, v%d, v%d\nv_add_f32 v%d, v%d, v%d\nv_add_f32 v%d, v%d, v%d" % (b, b, b + 1, b + 2, b + 2, b + 3, r + 16 + qn, b, b + 2))
            A("buffer_store_dwordx4 %s, v%d, %s, s%d offen offset:%d sc1" % (V(r + 16, 4), vT0, SR(sWS), sT1, GUP))
        A(skip + ":")

    p1_colsum(vB + 32, TMP + 16)
    p1_gemv(vB + 32, QX, "q")
    stamp("p1q_done")

    for t in range(NB1, NKA + NKV):
        k_load(t)
    vCnt = vD + 4
    A("buffer_load_dword v%d, off, %s, 0 sc1" % (vCnt, SR(sDbg)))
    def lds_base_s(dst, tile_slot):
        A("s_mul_i32 s%d, s%d, %d\ns_add_u32 s%d, s%d, %d" % (dst, sWv, 9 * 4096, dst, dst, LDS_TILES + tile_slot * 4096))
    lds_base_s(sM0, 0)
    for i in range(NKL):
        t = NKA + NKV + i
        for j in range(4):
            A("s_add_u32 s%d, s%d, %d" % (sOff, sKV, t * 16384 + KIMM[j]))
            A("s_add_u32 m0, s%d, %d" % (sM0, i * 4096 + j * 1024))
            A("s_nop 0")
            A("buffer_load_dwordx4 v%d, %s, s%d offen%s lds" % (vKoff, SR(sK), sOff, NTK))
    A("s_waitcnt vmcnt(%d)" % (NKL * 4))
    lc, lcd = newlab("CNT"), newlab("CNTD")
    A("v_cmp_ne_u32 vcc, 256, v%d" % vCnt)
    A("s_cbranch_vccz %s" % lcd)
    A(lc + ":")
    A("buffer_load_dword v%d, off, %s, 0 sc1" % (vCnt, SR(sDbg)))
    A("s_waitcnt vmcnt(0)")
    A("v_cmp_ne_u32 vcc, 256, v%d" % vCnt)
    A("s_cbranch_vccz %s" % lcd)
    A("s_cmp_eq_u32 s%d, 0\ns_cbranch_scc1 %s\ns_sub_u32 s%d, s%d, 1\ns_branch %s" % (sBud, lcd, sBud, sBud, lc))
    A(lcd + ":")

    gq_regs_ac = TMP
    gq_regs_x = TMP + 16
    def x_loads(xoff, dst):
        A("v_lshrrev_b32 v%d, 3, v%d\nv_lshlrev_b32 v%d, 18, v%d\nv_and_b32 v%d, 7, v%d\nv_lshl_add_u32 v%d, v%d, 5, v%d" %
          (vT1, vLane, vT1, vT1, vT2, vLane, vT1, vT2, vT1))
        A("s_add_u32 s%d, s%d, s%d" % (sT0, sGb, sLay))
        A("buffer_load_dwordx4 %s, v%d, %s, s%d offen offset:%d sc1" % (V(dst, 4), vT1, SR(sWS), sT0, xoff))
        A("buffer_load_dwordx4 %s, v%d, %s, s%d offen offset:%d sc1" % (V(dst + 4, 4), vT1, SR(sWS), sT0, xoff + 16))
    def gq_loads():
        x_loads(QX, gq_regs_x)
        A("v_lshlrev_b32 v%d, 3, v0" % vT0)
        for p in range(8):
            A("s_add_u32 s%d, s%d, %d" % (sT1, sT0, p * 262144))
            A("buffer_load_dwordx2 %s, v%d, %s, s%d offen offset:%d sc1" % (V(gq_regs_ac + 2 * p, 2), vT0, SR(sWS), sT1, QP))
    def stats(xr):
        m, t = vT0, vT2
        A("v_add_f32 v%d, v%d, v%d" % (m, xr, xr + 1))
        for i in range(2, 8):
            A("v_add_f32 v%d, v%d, v%d" % (m, m, xr + i))
        wave_red("add", m, t)
        A("v_mul_f32 v%d, 0x%08x, v%d" % (m, fb(1.0 / 512), m))
        for i in range(8):
            A("v_sub_f32 v%d, v%d, v%d" % (xr + i, xr + i, m))
        A("v_mul_f32 v%d, v%d, v%d" % (vT1, xr, xr))
        for i in range(1, 8):
            A("v_fmac_f32 v%d, v%d, v%d" % (vT1, xr + i, xr + i))
        wave_red("add", vT1, t)
        A("v_mov_b32 v%d, 0x%08x" % (t, fb(1e-5)))
        A("v_fmac_f32 v%d, 0x%08x, v%d" % (t, fb(1.0 / 512), vT1))
        A("v_rsq_f32 v%d, v%d" % (vT1, t))
        A("s_nop 0")
    def gq_finish():
        stats(gq_regs_x)
        r = gq_regs_ac
        for p in range(1, 8):
            A("v_add_f32 v%d, v%d, v%d\nv_add_f32 v%d, v%d, v%d" % (r, r, r + 2 * p, r + 1, r + 1, r + 2 * p + 1))
        A("v_fma_f32 v%d, -v%d, v%d, v%d" % (r, vT0, r + 1, r))
        A("v_mul_f32 v%d, v%d, v%d" % (r, r, vT1))
        A("v_cvt_pk_bf16_f32 v%d, v%d, v%d" % (r, r, r))
        A("v_lshlrev_b32 v%d, 1, v0" % vT0)
        A("ds_write_b16 v%d, v%d offset:%d" % (vT0, r, LDS_Q))
    def q_frags():
        A("s_waitcnt lgkmcnt(0)\ns_barrier")
        A("v_lshrrev_b32 v%d, 4, v%d\nv_lshlrev_b32 v%d, 5, v%d\nv_and_b32 v%d, 1, v%d\nv_lshl_add_u32 v%d, v%d, 4, v%d" %
          (vT0, vLane, vT0, vT0, vT1, vLane, vT0, vT1, vT0))
        A("ds_read_b128 %s, v%d offset:%d" % (V(vQ, 4), vT0, LDS_Q))
        A("ds_read_b128 %s, v%d offset:%d" % (V(vQ + 4, 4), vT0, LDS_Q + 128))

    VIMM = [0, 256, 2048, 2304]
    def v_load(buf, n, soff):
        A("buffer_load_dwordx4 %s, v%d, %s, s%d offen offset:%d%s" % (V(vB + 16 * buf + 4 * n, 4), vVoff, SR(sV), soff, VIMM[n], NTV))

    sk1, sk2 = newlab(), newlab()
    A("s_cmp_ge_u32 s%d, 2\ns_cbranch_scc1 %s" % (sWv, sk1))
    gq_loads()
    A(sk1 + ":")
    for i in range(NVL):
        for n in range(4):
            A("s_add_u32 s%d, s%d, %d" % (sOff, sKV, i * 16384 + VIMM[n]))
            A("s_add_u32 m0, s%d, %d" % (sM0, (NKL + i) * 4096 + n * 1024))
            A("s_nop 0")
            A("buffer_load_dwordx4 v%d, %s, s%d offen%s lds" % (vVoff, SR(sV), sOff, NTV))
    for b in range(2):
        A("s_add_u32 s%d, s%d, %d" % (sOff, sKV, (NVL + b) * 16384))
        for n in range(4):
            v_load(b, n, sOff)
    A("s_cmp_ge_u32 s%d, 2\ns_cbranch_scc1 %s" % (sWv, sk2))
    poll(gq_loads, list(range(TMP, TMP + 24)), vT2, first_wait=NVL * 4 + 8)
    gq_finish()
    A(sk2 + ":")
    A("s_waitcnt vmcnt(%d)" % (NVL * 4 + 8))
    stamp("k_landed")

    A("L_PASS:")
    q_frags()
    stamp("q_ready")
    seq = []
    ri = 0
    for i in range(NKL):
        seq.append(("ldsread", i))
        for _ in range(3):
            seq.append(("reg", ri)); ri += 1
        seq.append(("lds", i))
    while ri < NKA + NKV:
        seq.append(("reg", ri)); ri += 1
    KT = vB + 32
    A("s_waitcnt lgkmcnt(0)")
    prev = None
    cnt = 0
    def post_a(dset, sset):
        d = vD + 8 * dset
        s = vS + 4 * sset
        return ["v_cndmask_b32_e64 v%d, v%d, v%d, s[%d:%d]" % (vS + 8, d + 1, d + 0, sMev, sMev + 1),
                "v_cndmask_b32_e64 v%d, v%d, v%d, s[%d:%d]" % (vS + 9, d + 3, d + 2, sMev, sMev + 1)], \
               ["v_add_f32_dpp v%d, v%d, v%d quad_perm:[1,0,3,2] row_mask:0xf bank_mask:0xf" % (s + 0, vS + 8, vS + 8),
                "v_add_f32_dpp v%d, v%d, v%d quad_perm:[1,0,3,2] row_mask:0xf bank_mask:0xf" % (s + 1, vS + 9, vS + 9)], \
               ["v_cndmask_b32_e64 v%d, v%d, v%d, s[%d:%d]" % (vS + 10, d + 5, d + 4, sMev, sMev + 1),
                "v_cndmask_b32_e64 v%d, v%d, v%d, s[%d:%d]" % (vS + 11, d + 7, d + 6, sMev, sMev + 1)], \
               ["v_add_f32_dpp v%d, v%d, v%d quad_perm:[1,0,3,2] row_mask:0xf bank_mask:0xf" % (s + 2, vS + 10, vS + 10),
                "v_add_f32_dpp v%d, v%d, v%d quad_perm:[1,0,3,2] row_mask:0xf bank_mask:0xf" % (s + 3, vS + 11, vS + 11)]
    def post_write(sset, tile):
        A("s_mov_b64 exec, s[%d:%d]" % (sMc0, sMc0 + 1))
        A("ds_write_b128 v%d, %s offset:%d" % (vPw, V(vS + 4 * sset, 4), tile * 64))
        A("s_mov_b64 exec, -1")
    for kind, idx in seq:
        if kind == "ldsread":
            for j in range(4):
                A("ds_read_b128 %s, v%d offset:%d" % (V(KT + 4 * j, 4), vTile, idx * 4096 + j * 1024))
            continue
        if kind == "reg":
            tile = idx
            ops = [kreg(idx, j) for j in range(4)]
        else:
            tile = NKA + NKV + idx
            ops = [V(KT + 4 * j, 4) for j in range(4)]
            A("s_waitcnt lgkmcnt(0)")
        dset = cnt % 2
        d0, d1 = V(vD + 8 * dset, 4), V(vD + 8 * dset + 4, 4)
        mf = ["v_mfma_f32_16x16x32_bf16 %s, %s, %s, 0" % (d0, ops[0], V(vQ, 4)),
              "v_mfma_f32_16x16x32_bf16 %s, %s, %s, %s" % (d0, ops[1], V(vQ + 4, 4), d0),
              "v_mfma_f32_16x16x32_bf16 %s, %s, %s, 0" % (d1, ops[2], V(vQ, 4)),
              "v_mfma_f32_16x16x32_bf16 %s, %s, %s, %s" % (d1, ops[3], V(vQ + 4, 4), d1)]
        if prev is None:
            for m in mf: A(m)
        else:
            pa = post_a(prev[0], prev[0])
            if cnt == 1:
                A("s_nop 7")
            for m, p in zip(mf, pa):
                A(m)
                for x in p: A(x)
            post_write(prev[0], prev[1])
        prev = (dset, tile)
        cnt += 1
    A("s_nop 7\ns_nop 3")
    pa = post_a(prev[0], prev[0])
    for x in pa[0] + pa[2]: A(x)
    A("s_nop 1")
    for x in pa[1] + pa[3]: A(x)
    post_write(prev[0], prev[1])
    A("s_add_u32 s%d, s%d, %d" % (sOff, sKV, (NVL + 2) * 16384))
    for n in range(4):
        v_load(2, n, sOff)
    e = vD
    A("s_lshl_b32 s%d, s%d, 11" % (sT1, sWv))
    A("v_lshlrev_b32 v%d, 5, v%d\nv_add_u32 v%d, s%d, v%d" % (vT0, vLane, vT0, sT1, vT0))
    A("s_waitcnt lgkmcnt(0)")
    A("ds_read_b128 %s, v%d" % (V(e, 4), vT0))
    A("ds_read_b128 %s, v%d offset:16" % (V(e + 4, 4), vT0))
    A("s_waitcnt lgkmcnt(0)")
    A("v_max3_f32 v%d, v%d, v%d, v%d" % (vM, e, e + 1, e + 2))
    A("v_max3_f32 v%d, v%d, v%d, v%d" % (vM, vM, e + 3, e + 4))
    A("v_max3_f32 v%d, v%d, v%d, v%d" % (vM, vM, e + 5, e + 6))
    A("v_max_f32 v%d, v%d, v%d" % (vM, vM, e + 7))
    wave_red("max", vM, vT1)
    A("v_mul_f32 v%d, s%d, v%d" % (vM, sC1, vM))
    for i in range(8):
        A("v_fma_f32 v%d, v%d, s%d, -v%d" % (e + i, e + i, sC1, vM))
    for i in range(8):
        A("v_exp_f32 v%d, v%d" % (e + i, e + i))
    A("s_nop 0")
    A("v_add_f32 v%d, v%d, v%d" % (vLs, e, e + 1))
    for i in range(2, 8):
        A("v_add_f32 v%d, v%d, v%d" % (vLs, vLs, e + i))
    for i in range(8):
        A("v_cvt_pk_bf16_f32 v%d, v%d, 0" % (e + i, e + i))
    A("ds_write_b128 v%d, %s" % (vT0, V(e, 4)))
    A("ds_write_b128 v%d, %s offset:16" % (vT0, V(e + 4, 4)))
    for i in range(8):
        A("v_mov_b32 v%d, 0" % (vAcc + i))
    wave_red("add", vLs, vT1)
    A("s_waitcnt lgkmcnt(0)")
    stamp("p_ready")
    def p_read(pset, addr, off):
        A("ds_read_b128 %s, v%d offset:%d" % (V(vS + 8 * pset, 4), addr, off))
    def p_shift(pset):
        for n in range(4):
            A("v_lshlrev_b32 v%d, 16, v%d" % (vS + 8 * pset + 4 + n, vS + 8 * pset + n))
    def dots(src, pset, n):
        for k in range(4):
            A("v_dot2c_f32_bf16 v%d, v%d, v%d" % (vAcc + 2 * k, src + k, vS + 8 * pset + n))
            A("v_dot2c_f32_bf16 v%d, v%d, v%d" % (vAcc + 2 * k + 1, src + k, vS + 8 * pset + 4 + n))
    A("s_waitcnt vmcnt(12)")
    p_read(0, vPw, 0)
    for n in range(4):
        A("ds_read_b128 %s, v%d offset:%d" % (V(vD + 4 * n, 4), vTile, (NKL + 0) * 4096 + n * 1024))
    p_read(1, vPw, 64)
    A("s_waitcnt lgkmcnt(1)")
    p_shift(0)
    for n in range(4):
        dots(vD + 4 * n, 0, n)
        A("ds_read_b128 %s, v%d offset:%d" % (V(vD + 4 * n, 4), vTile, (NKL + 1) * 4096 + n * 1024))
    p_read(0, vPw, 128)
    A("s_waitcnt lgkmcnt(1)")
    p_shift(1)
    for n in range(4):
        dots(vD + 4 * n, 1, n)
    def pbase(b):
        return [vS, vS + 8, vD + 8][b]
    def p_read3(b, off):
        A("ds_read_b128 %s, v%d offset:%d" % (V(pbase(b), 4), vPa, off))
    def p_shift3(b):
        for n in range(4):
            A("v_lshlrev_b32 v%d, 16, v%d" % (pbase(b) + 4 + n, pbase(b) + n))
    def dots3(b, n):
        src = vB + 16 * b + 4 * n
        for k in range(4):
            A("v_dot2c_f32_bf16 v%d, v%d, v%d" % (vAcc + 2 * k, src + k, pbase(b) + n))
            A("v_dot2c_f32_bf16 v%d, v%d, v%d" % (vAcc + 2 * k + 1, src + k, pbase(b) + 4 + n))
    A("v_add_u32 v%d, %d, v%d" % (vPa, NVL * 64, vPw))
    A("s_add_u32 s%d, s%d, %d" % (sOff, sKV, (NVL + 3) * 16384))
    A("s_mov_b32 s%d, 0" % sCnt)
    A("L_VLOOP:")
    for b in range(3):
        p_read3((b + 1) % 3, (b + 1) * 64)
        A("s_waitcnt lgkmcnt(1)")
        p_shift3(b)
        for n in range(4):
            A("s_waitcnt vmcnt(11)")
            dots3(b, n)
            v_load(b, n, sOff)
        A("s_add_u32 s%d, s%d, 16384" % (sOff, sOff))
    A("v_add_u32 v%d, 192, v%d" % (vPa, vPa))
    A("s_add_u32 s%d, s%d, 1\ns_cmp_lt_u32 s%d, 9\ns_cbranch_scc1 L_VLOOP" % (sCnt, sCnt, sCnt))
    vWo = vT0
    A("v_lshrrev_b32 v%d, 4, v%d\nv_lshlrev_b32 v%d, 10, v%d\nv_and_b32 v%d, 15, v%d\nv_lshl_add_u32 v%d, v%d, 3, v%d" %
      (vWo, vLane, vWo, vWo, vT2, vLane, vWo, vT2, vWo))
    vGu = vT1
    A("v_lshrrev_b32 v%d, 4, v%d\nv_mul_u32_u24 v%d, %d, v%d\nv_and_b32 v%d, 7, v%d\nv_min_u32 v%d, 5, v%d\nv_lshl_add_u32 v%d, v%d, 4, v%d" %
      (vGu, vLane, vGu, 4 * 2752, vGu, vT2, vLane, vT2, vT2, vGu, vT2, vGu))
    vWq = vQ
    wq_voff(vWq)
    W = 0
    for n in range(3):
        A("s_add_u32 s%d, s%d, %d" % (sT1, sDno, n * 16384))
        A("buffer_load_dwordx2 %s, v%d, %s, s%d offen" % (V(vD + 2 * n, 2), vWo, SR(sWD), sT1))
        W += 1
    for b in range(3):
        if b < 2:
            p_read3(b + 1, (b + 1) * 64)
            A("s_waitcnt lgkmcnt(1)")
        else:
            A("s_waitcnt lgkmcnt(0)")
        p_shift3(b)
        for n in range(4):
            k = 4 * b + n
            A("s_waitcnt vmcnt(%d)" % (11 - k + W))
            dots3(b, n)
            if b == 0:
                for m in (2 * n, 2 * n + 1):
                    A("s_add_u32 s%d, s%d, %d" % (sT1, sWoo, m * 4096))
                    A("buffer_load_dwordx2 %s, v%d, %s, s%d offen" % (V(vB + 2 * m, 2), vWo, SR(sWO), sT1))
                    W += 1
            elif b == 1:
                A("s_add_u32 s%d, s%d, %d" % (sT1, sGuo, n * 2752))
                A("s_mov_b64 exec, s[%d:%d]" % (sMlo, sMlo + 1))
                A("buffer_load_dwordx4 %s, v%d, %s, s%d offen" % (V(vB + 16 + 4 * n, 4), vGu, SR(sWG), sT1))
                A("s_mov_b64 exec, s[%d:%d]" % (sMhi, sMhi + 1))
                A("buffer_load_dwordx4 %s, v%d, %s, s%d offen" % (V(vB + 16 + 4 * n, 4), vGu, SR(sWU), sT1))
                A("s_mov_b64 exec, -1")
                W += 2
            else:
                wq_load(n, vWq)
                W += 1
    stamp("v_done")
    red4(vAcc); red4(vAcc + 4)
    lds_col_addr(vT0)
    A("ds_write_b32 v%d, v%d" % (vT0, vAcc))
    A("ds_write_b32 v%d, v%d offset:16" % (vT0, vAcc + 4))
    A("v_mov_b32 v%d, v%d\nv_mov_b32 v%d, v%d" % (vS, vM, vS + 1, vLs))
    A("s_lshl_b32 s%d, s%d, 11\nv_mov_b32 v%d, s%d" % (sT1, sWv, vT0, sT1))
    A("s_mov_b64 exec, 1")
    A("ds_write_b64 v%d, %s offset:1536" % (vT0, V(vS, 2)))
    A("s_mov_b64 exec, -1")
    A("s_waitcnt lgkmcnt(0)\ns_barrier")
    sk = newlab()
    A("s_cmp_ge_u32 s%d, 2\ns_cbranch_scc1 %s" % (sWv, sk))
    r = TMP
    A("v_lshlrev_b32 v%d, 2, v0\nv_mov_b32 v%d, 0" % (vT0, vT1))
    for w in range(4):
        A("ds_read_b32 v%d, v%d offset:%d" % (r + w, vT0, w * 2048))
        A("ds_read_b64 %s, v%d offset:%d" % (V(r + 4 + 2 * w, 2), vT1, w * 2048 + 1536))
    A("s_waitcnt lgkmcnt(0)")
    Mx = r + 12
    A("v_max3_f32 v%d, v%d, v%d, v%d\nv_max_f32 v%d, v%d, v%d" % (Mx, r + 4, r + 6, r + 8, Mx, Mx, r + 10))
    for w in range(4):
        A("v_sub_f32 v%d, v%d, v%d" % (r + 4 + 2 * w, r + 4 + 2 * w, Mx))
    for w in range(4):
        A("v_exp_f32 v%d, v%d" % (r + 4 + 2 * w, r + 4 + 2 * w))
    A("s_nop 0")
    A("v_mul_f32 v%d, v%d, v%d\nv_mul_f32 v%d, v%d, v%d" % (r + 14, r, r + 4, Mx + 1, r + 5, r + 4))
    for w in range(1, 4):
        A("v_fmac_f32 v%d, v%d, v%d\nv_fmac_f32 v%d, v%d, v%d" % (r + 14, r + w, r + 4 + 2 * w, Mx + 1, r + 5 + 2 * w, r + 4 + 2 * w))
    A("s_add_u32 s%d, s%d, s%d" % (sT1, sSlot, sLay))
    A("buffer_store_dword v%d, v%d, %s, s%d offen offset:%d sc1" % (r + 14, vT0, SR(sWS), sT1, OP))
    sk3 = newlab()
    A("s_cmp_lg_u32 s%d, 0\ns_cbranch_scc1 %s" % (sWv, sk3))
    A("s_mov_b64 exec, 1")
    A("buffer_store_dwordx2 %s, off, %s, s%d offset:%d sc1" % (V(Mx, 2), SR(sWS), sT1, ML))
    A("s_mov_b64 exec, -1")
    A(sk3 + ":")
    stamp("o_pub")
    ro, rml = TMP, TMP + 8
    def go_loads():
        A("v_lshlrev_b32 v%d, 2, v0" % vT0)
        A("s_add_u32 s%d, s%d, s%d" % (sT0, sGb, sLay))
        for p in range(8):
            A("s_add_u32 s%d, s%d, %d" % (sT1, sT0, p * 262144))
            A("buffer_load_dword v%d, v%d, %s, s%d offen offset:%d sc1" % (ro + p, vT0, SR(sWS), sT1, OP))
            A("buffer_load_dwordx2 %s, off, %s, s%d offset:%d sc1" % (V(rml + 2 * p, 2), SR(sWS), sT1, ML))
    poll(go_loads, list(range(TMP, TMP + 24)), vT2)
    Mx = TMP + 24
    A("v_max3_f32 v%d, v%d, v%d, v%d" % (Mx, rml, rml + 2, rml + 4))
    A("v_max3_f32 v%d, v%d, v%d, v%d" % (Mx, Mx, rml + 6, rml + 8))
    A("v_max3_f32 v%d, v%d, v%d, v%d" % (Mx, Mx, rml + 10, rml + 12))
    A("v_max_f32 v%d, v%d, v%d" % (Mx, Mx, rml + 14))
    for p in range(8):
        A("v_sub_f32 v%d, v%d, v%d" % (rml + 2 * p, rml + 2 * p, Mx))
    for p in range(8):
        A("v_exp_f32 v%d, v%d" % (rml + 2 * p, rml + 2 * p))
    A("s_nop 0")
    oo, ll = Mx + 1, Mx + 2
    A("v_mul_f32 v%d, v%d, v%d\nv_mul_f32 v%d, v%d, v%d" % (oo, ro, rml, ll, rml + 1, rml))
    for p in range(1, 8):
        A("v_fmac_f32 v%d, v%d, v%d\nv_fmac_f32 v%d, v%d, v%d" % (oo, ro + p, rml + 2 * p, ll, rml + 2 * p + 1, rml + 2 * p))
    A("v_rcp_f32 v%d, v%d\ns_nop 0\nv_mul_f32 v%d, v%d, v%d" % (ll, ll, oo, oo, ll))
    A("v_cvt_pk_bf16_f32 v%d, v%d, 0" % (oo, oo))
    A("v_and_b32 v%d, 0x60, v0\nv_and_b32 v%d, 3, v0\nv_lshl_add_u32 v%d, v%d, 3, v%d" % (vT0, vT1, vT0, vT1, vT0))
    A("v_bfe_u32 v%d, v0, 2, 3\nv_add_lshl_u32 v%d, v%d, v%d, 2" % (vT1, vT0, vT0, vT1))
    A("ds_write_b32 v%d, v%d offset:%d" % (vT0, oo, LDS_OM))
    A(sk + ":")
    A("s_waitcnt vmcnt(0) lgkmcnt(0)\ns_barrier")
    stamp("o_ready")

    def p2_gemv(W, nrows, lds_mask, mstride, outoff):
        mk = TMP
        hi = TMP + 8
        acc = TMP + 16
        A("v_lshrrev_b32 v%d, 4, v%d\nv_lshlrev_b32 v%d, %d, v%d" % (vT0, vLane, vT0, int(math.log2(mstride * 4)), vT0))
        A("s_lshl_b32 s%d, s%d, %d\nv_add_u32 v%d, s%d, v%d" % (sT1, sWv, int(math.log2(mstride * 16)), vT0, sT1, vT0))
        A("ds_read_b128 %s, v%d offset:%d" % (V(mk, 4), vT0, lds_mask))
        if nrows > 4:
            A("ds_read_b128 %s, v%d offset:%d" % (V(mk + 4, 4), vT0, lds_mask + 16))
        A("s_waitcnt lgkmcnt(0)")
        for n in range(nrows):
            A("v_lshlrev_b32 v%d, 16, v%d" % (hi + n, mk + n))
        for n in range(nrows):
            for k in range(2):
                w = W + 2 * n + k
                c0 = "0" if n == 0 else "v%d" % (acc + 2 * k)
                c1_ = "0" if n == 0 else "v%d" % (acc + 2 * k + 1)
                A("v_dot2_f32_bf16 v%d, v%d, v%d, %s" % (acc + 2 * k, w, mk + n, c0))
                A("v_dot2_f32_bf16 v%d, v%d, v%d, %s" % (acc + 2 * k + 1, w, hi + n, c1_))
        red4(acc)
        A("v_and_b32 v%d, 15, v%d\nv_lshlrev_b32 v%d, 4, v%d\nv_lshrrev_b32 v%d, 4, v%d\nv_lshl_add_u32 v%d, v%d, 2, v%d" %
          (vT0, vLane, vT0, vT0, vT2, vLane, vT0, vT2, vT0))
        A("s_lshl_b32 s%d, s%d, 11\nv_add_u32 v%d, s%d, v%d" % (sT1, sWv, vT0, sT1, vT0))
        A("ds_write_b32 v%d, v%d offset:1024" % (vT0, acc))
        A("s_waitcnt lgkmcnt(0)\ns_barrier")
        skp = newlab()
        A("s_cmp_ge_u32 s%d, 1\ns_cbranch_scc1 %s" % (sWv, skp))
        A("v_lshlrev_b32 v%d, 2, v0" % vT0)
        for w in range(4):
            A("ds_read_b32 v%d, v%d offset:%d" % (TMP + w, vT0, w * 2048 + 1024))
        A("s_add_u32 s%d, s%d, s%d" % (sT1, sSlot, sLay))
        A("s_waitcnt lgkmcnt(0)")
        A("v_add_f32 v%d, v%d, v%d\nv_add_f32 v%d, v%d, v%d\nv_add_f32 v%d, v%d, v%d" % (TMP, TMP, TMP + 1, TMP + 2, TMP + 2, TMP + 3, TMP, TMP, TMP + 2))
        A("buffer_store_dword v%d, v%d, %s, s%d offen offset:%d sc1" % (TMP, vT0, SR(sWS), sT1, outoff))
        A(skp + ":")

    def v_prefetch(buf):
        skp = newlab()
        A("s_cmp_lg_u32 s%d, 0\ns_cbranch_scc1 %s" % (sLay, skp))
        A("s_add_u32 s%d, s%d, %d" % (sOff, sKV, (NVL + buf) * 16384))
        for n in range(4):
            v_load(buf, n, sOff)
        A(skp + ":")

    def r_stage(off):
        rr = TMP
        def loads():
            A("s_add_u32 s%d, s%d, s%d" % (sT0, sRb, sLay))
            for m in range(8):
                A("s_add_u32 s%d, s%d, %d" % (sT1, sT0, m * 32768))
                A("buffer_load_dword v%d, v%d, %s, s%d offen offset:%d sc1" % (rr + m, vRoff, SR(sWS), sT1, off))
        poll(loads, list(range(rr, rr + 8)), vT2)
        A("v_add_f32 v%d, v%d, v%d\nv_add_f32 v%d, v%d, v%d\nv_add_f32 v%d, v%d, v%d\nv_add_f32 v%d, v%d, v%d" %
          (rr, rr, rr + 1, rr + 2, rr + 2, rr + 3, rr + 4, rr + 4, rr + 5, rr + 6, rr + 6, rr + 7))
        A("v_add_f32 v%d, v%d, v%d\nv_add_f32 v%d, v%d, v%d\nv_add_f32 v%d, v%d, v%d" % (rr, rr, rr + 2, rr + 4, rr + 4, rr + 6, rr, rr, rr + 4))
        A("v_mov_b32 v%d, 1.0" % (rr + 1))
        A("s_nop 1")
        A("v_mfma_f32_16x16x4_f32 %s, v%d, v%d, 0" % (V(rr + 4, 4), rr, rr + 1))
        A("s_nop 7\ns_nop 3")
        for i in range(4):
            rnd_bf16(rr + 4 + i)
            A("v_add_f32 v%d, v%d, v%d" % (vX + i, vX + i, rr + 4 + i))
            rnd_bf16(vX + i)

    p2_gemv(vB, 8, LDS_OM, 8, WOP)
    v_prefetch(0)
    stamp("wo_pub")
    p1_colsum(vB + 16, TMP + 16)
    r_stage(WOP)
    stamp("x1_ready")
    p1_gemv(vB + 16, GUX, "gu")
    v_prefetch(1)
    stamp("gu_pub")
    sk = newlab()
    A("s_cmp_ge_u32 s%d, 1\ns_cbranch_scc1 %s" % (sWv, sk))
    rg = TMP
    rx = vD + 8
    def gg_loads():
        x_loads(GUX, rx)
        A("v_lshlrev_b32 v%d, 4, v0" % vT0)
        for p in range(8):
            A("s_add_u32 s%d, s%d, %d" % (sT1, sT0, p * 262144))
            A("buffer_load_dwordx4 %s, v%d, %s, s%d offen offset:%d sc1" % (V(rg + 4 * p, 4), vT0, SR(sWS), sT1, GUP))
    poll(gg_loads, list(range(rg, rg + 32)) + list(range(rx, rx + 8)), vT2)
    stats(rx)
    for p in range(1, 8):
        for qn in range(4):
            A("v_add_f32 v%d, v%d, v%d" % (rg + qn, rg + qn, rg + 4 * p + qn))
    A("v_fma_f32 v%d, -v%d, v%d, v%d\nv_fma_f32 v%d, -v%d, v%d, v%d" % (rg, vT0, rg + 2, rg, rg + 1, vT0, rg + 3, rg + 1))
    A("v_mul_f32 v%d, v%d, v%d\nv_mul_f32 v%d, v%d, v%d" % (rg, rg, vT1, rg + 1, rg + 1, vT1))
    rnd_bf16(rg); rnd_bf16(rg + 1)
    A("v_mul_f32 v%d, 0x%08x, v%d" % (rg, fb(-math.log2(math.e)), rg))
    A("v_exp_f32 v%d, v%d\ns_nop 0\nv_add_f32 v%d, 1.0, v%d\nv_rcp_f32 v%d, v%d\ns_nop 0" % (rg, rg, rg, rg, rg, rg))
    rnd_bf16(rg)
    A("v_mul_f32 v%d, v%d, v%d" % (rg, rg, rg + 1))
    A("v_cvt_pk_bf16_f32 v%d, v%d, 0" % (rg, rg))
    A("v_cmp_gt_u32 vcc, s%d, v0\ns_nop 1\nv_cndmask_b32 v%d, 0, v%d, vcc" % (sNown, rg, rg))
    A("v_bfe_u32 v%d, v0, 2, 2\nv_lshlrev_b32 v%d, 4, v%d\nv_and_b32 v%d, 3, v0\nv_lshl_add_u32 v%d, v%d, 2, v%d" % (vT0, vT0, vT0, vT1, vT0, vT1, vT0))
    A("v_lshrrev_b32 v%d, 4, v0\nv_add_lshl_u32 v%d, v%d, v%d, 2" % (vT1, vT0, vT0, vT1))
    A("ds_write_b32 v%d, v%d offset:%d" % (vT0, rg, LDS_HM))
    A(sk + ":")
    A("s_waitcnt lgkmcnt(0)\ns_barrier")
    stamp("h_ready")
    p2_gemv(vD, 3, LDS_HM, 4, DNP)
    stamp("dn_pub")
    lfin = newlab("FIN")
    A("s_cmp_lg_u32 s%d, 0\ns_cbranch_scc1 %s" % (sLay, lfin))
    p1_colsum(vB + 32, TMP + 16)
    r_stage(DNP)
    stamp("x2_ready")
    A("s_mov_b32 s%d, 4096" % sLay)
    p1_gemv(vB + 32, QX, "q")
    sk = newlab()
    A("s_cmp_ge_u32 s%d, 2\ns_cbranch_scc1 %s" % (sWv, sk))
    poll(gq_loads, list(range(TMP, TMP + 24)), vT2)
    gq_finish()
    A(sk + ":")
    A("s_branch L_PASS")
    A(lfin + ":")
    A("s_cmp_lg_u32 s%d, 0\ns_cbranch_scc1 L_END" % sH)
    r_stage(DNP)
    A("v_cvt_pk_bf16_f32 v%d, v%d, v%d\nv_cvt_pk_bf16_f32 v%d, v%d, v%d" % (TMP, vX, vX + 1, TMP + 1, vX + 2, vX + 3))
    A("v_lshrrev_b32 v%d, 4, v%d\nv_lshlrev_b32 v%d, 3, v%d" % (vT0, vLane, vT0, vT0))
    A("s_lshl_b32 s%d, s%d, 7\ns_lshl_b32 s%d, s%d, 5\ns_add_u32 s%d, s%d, s%d" % (sT0, sS, sT1, sWv, sT0, sT0, sT1))
    A("s_mov_b64 exec, s[%d:%d]" % (sMc0, sMc0 + 1))
    A("buffer_store_dwordx2 %s, v%d, %s, s%d offen" % (V(TMP, 2), vT0, SR(sOut), sT0))
    A("s_mov_b64 exec, -1")
    stamp("end")
    A("L_END:")
    A("s_endpgm")
    tail = """.section .rodata,"a"
.p2align 6
.amdhsa_kernel %s
  .amdhsa_next_free_vgpr 512
  .amdhsa_next_free_sgpr 102
  .amdhsa_accum_offset 256
  .amdhsa_group_segment_fixed_size 0
  .amdhsa_kernarg_size 96
  .amdhsa_user_sgpr_count 2
  .amdhsa_user_sgpr_kernarg_segment_ptr 1
  .amdhsa_system_sgpr_workgroup_id_x 1
.end_amdhsa_kernel
""" % NAME
    return "\n".join(hdr) + "\n" + "\n".join(L) + "\n" + tail


if __name__ == "__main__":
    import argparse
    ap = argparse.ArgumentParser()
    ap.add_argument("-o", default="interleave_layers__gqa_block_cached__glu_gated_glu__decode.s")
    ap.add_argument("--diag", action="store_true")
    a = ap.parse_args()
    cfg = Cfg()
    cfg.diag = a.diag
    cfg.stamp_names = []
    s = gen(cfg)
    open(a.o, "w").write(s)
    if a.diag:
        open(a.o + ".stamps", "w").write("\n".join(cfg.stamp_names))
    print("wrote", a.o, len(s), "bytes")
```

```python
import sys, math

NAME = "interleave_layers__gqa_block_cached__glu_gated_glu__decode_kernel"

class Cfg:
    diag = False
    nt_k = True
    nt_v = True
    budget = 1 << 20


def gen(cfg):
    L = []
    def A(s):
        for line in s.split("\n"):
            L.append("    " + line if not line.endswith(":") else line)
    lab_id = [0]
    def newlab(p="L"):
        lab_id[0] += 1
        return "%s_%d" % (p, lab_id[0])

    NTK = " nt" if cfg.nt_k else ""
    NTV = " nt" if cfg.nt_v else ""

    vTid, vLane, vVoff, vTile = 0, 1, 2, 3
    vX = 4
    vPw, vPa, vRoff, vLs, vM = 8, 9, 10, 11, 12
    vT0, vT1, vT2 = 13, 14, 15
    vS = 16
    vAcc = 32
    vQ = 40
    vD = 48
    vB = 64
    vK = 112
    NKV = 9
    NKA = 16
    NKL = 7
    NVL = 2
    TMP = 16

    sWv, sH, sS = 3, 4, 5
    sK, sV, sWS, sWQ, sWO, sWG, sWU, sWD, sXi, sOut, sDbg = 8, 12, 16, 20, 24, 28, 32, 36, 40, 44, 48
    sMev, sMc0, sMlo, sMhi = 52, 54, 56, 58
    sKV, sOff, sLay, sSlot, sCnt, sBud, sC1, sOne = 60, 61, 62, 63, 64, 65, 66, 67
    sT0, sT1, sGb, sRb, sF0, sNown, sOneHi = 68, 69, 70, 71, 72, 73, 74
    sWqo, sWoo, sGuo, sDno = 75, 76, 77, 78
    sEx = 80
    sTs = 82
    sM0 = 84
    sArg = 86

    QP, QX, OP, ML, WOP, GUP, GUX, DNP = 0, 1024, 1280, 1792, 2048, 2304, 3328, 3584
    LDS_OM, LDS_HM, LDS_Q = 8192, 8704, 8960
    LDS_TILES = 12288
    LDS_TOTAL = LDS_TILES + 4 * 9 * 4096

    def srd(s, lo, hi, nbytes):
        A("s_mov_b32 s%d, s%d\ns_mov_b32 s%d, s%d\ns_mov_b32 s%d, 0x%x\ns_mov_b32 s%d, 0x00020000" %
          (s, lo, s + 1, hi, s + 2, nbytes, s + 3))
    def SR(s):
        return "s[%d:%d]" % (s, s + 3)
    def V(a, n=1):
        return "v%d" % a if n == 1 else "v[%d:%d]" % (a, a + n - 1)
    def AG(a, n):
        return "a[%d:%d]" % (a, a + n - 1)

    stamp_n = [0]
    def stamp(name):
        if not cfg.diag:
            return
        i = stamp_n[0]; stamp_n[0] += 1
        A("s_memrealtime s[%d:%d]" % (sTs, sTs + 1))
        A("s_waitcnt lgkmcnt(0)")
        A("v_mov_b32 v%d, s%d" % (vT2, sTs))
        A("s_lshl_b32 s%d, s2, 2\ns_add_u32 s%d, s%d, s%d\ns_lshl_b32 s%d, s%d, 8" % (sTs, sTs, sTs, sWv, sTs, sTs))
        A("s_lshr_b32 s%d, s%d, 5\ns_add_u32 s%d, s%d, s%d" % (sTs + 1, sLay, sTs, sTs, sTs + 1))
        A("s_add_u32 s%d, s%d, 0x%x" % (sTs, sTs, (4 << 20) + i * 4))
        A("s_mov_b64 s[%d:%d], exec\ns_mov_b64 exec, 1" % (sEx + 8, sEx + 9))
        A("buffer_store_dword v%d, off, %s, s%d" % (vT2, SR(sWS), sTs))
        A("s_mov_b64 exec, s[%d:%d]" % (sEx + 8, sEx + 9))
        cfg.stamp_names.append(name)

    def wave_red(op, v, t):
        for m in ["quad_perm:[1,0,3,2]", "quad_perm:[2,3,0,1]", "row_half_mirror", "row_mirror"]:
            A("s_nop 1")
            A("v_%s_f32_dpp v%d, v%d, v%d %s row_mask:0xf bank_mask:0xf" % (op, v, v, v, m))
        for sw in ["v_permlane16_swap_b32", "v_permlane32_swap_b32"]:
            A("v_mov_b32 v%d, v%d" % (t, v))
            A("s_nop 1")
            A("%s v%d, v%d" % (sw, t, v))
            A("v_%s_f32 v%d, v%d, v%d" % (op, v, t, v))

    def red4(a):
        A("s_nop 2")
        A("v_permlane16_swap_b32 v%d, v%d" % (a, a + 1))
        A("v_permlane16_swap_b32 v%d, v%d" % (a + 2, a + 3))
        A("v_add_f32 v%d, v%d, v%d" % (a, a, a + 1))
        A("v_add_f32 v%d, v%d, v%d" % (a + 2, a + 2, a + 3))
        A("s_nop 1")
        A("v_permlane32_swap_b32 v%d, v%d" % (a, a + 2))
        A("v_add_f32 v%d, v%d, v%d" % (a, a, a + 2))

    def rnd_bf16(v, t=None):
        A("v_cvt_pk_bf16_f32 v%d, v%d, v%d" % (v, v, v))
        A("v_lshlrev_b32 v%d, 16, v%d" % (v, v))

    def check_regs(regs, t):
        regs = list(regs)
        A("v_max_u32 v%d, v%d, v%d" % (t, regs[0], regs[1]) if len(regs) > 1 else "v_mov_b32 v%d, v%d" % (t, regs[0]))
        i = 2
        while i < len(regs):
            if i + 1 < len(regs):
                A("v_max3_u32 v%d, v%d, v%d, v%d" % (t, t, regs[i], regs[i + 1])); i += 2
            else:
                A("v_max_u32 v%d, v%d, v%d" % (t, t, regs[i])); i += 1
        A("v_cmp_eq_u32 vcc, -1, v%d" % t)

    def poll(emit_loads, regs, t, first_wait=None):
        lp, done = newlab("POLL"), newlab("PDONE")
        if first_wait is not None:
            A("s_waitcnt vmcnt(%d)" % first_wait)
            check_regs(regs, t)
            A("s_cbranch_vccz %s" % done)
        A(lp + ":")
        emit_loads()
        A("s_waitcnt vmcnt(0)")
        check_regs(regs, t)
        A("s_cbranch_vccz %s" % done)
        A("s_cmp_eq_u32 s%d, 0\ns_cbranch_scc1 %s\ns_sub_u32 s%d, s%d, 1\ns_branch %s" % (sBud, done, sBud, sBud, lp))
        A(done + ":")

    hdr = []
    hdr.append("; @launch grid=(256,1,1) block=(256,1,1) lds=%d" % LDS_TOTAL)
    hdr.append('.amdgcn_target "amdgcn-amd-amdhsa--gfx950"')
    hdr.append(".text\n.globl %s\n.p2align 8\n.type %s,@function\n%s:" % (NAME, NAME, NAME))

    A("s_cmp_ge_u32 s2, 256\ns_cbranch_scc1 L_END")
    A("s_load_dwordx16 s[84:99], s[0:1], 0")
    A("s_load_dwordx8 s[72:79], s[0:1], 64")
    A("v_and_b32 v%d, 63, v0" % vLane)
    A("v_lshrrev_b32 v%d, 6, v0" % vT0)
    A("s_and_b32 s%d, s2, 31\ns_lshr_b32 s%d, s2, 5" % (sH, sS))
    A("v_readfirstlane_b32 s%d, v%d" % (sWv, vT0))
    A("s_waitcnt lgkmcnt(0)")
    srd(sXi, 84, 85, 1024)
    srd(sK, 86, 87, 128 << 20)
    srd(sV, 88, 89, 128 << 20)
    srd(sWQ, 90, 91, 4 << 20)
    srd(sWO, 92, 93, 4 << 20)
    srd(sWG, 96, 97, 512 * 2752)
    srd(sWU, 98, 99, 512 * 2752)
    srd(sWD, 72, 73, 1376 * 1024)
    srd(sOut, 74, 75, 1024)
    srd(sDbg, 76, 77, 256)
    srd(sWS, 78, 79, (8 << 20) if cfg.diag else (2 << 20))
    A("s_mov_b32 s%d, 0x55555555\ns_mov_b32 s%d, 0x55555555" % (sMev, sMev + 1))
    A("s_mov_b32 s%d, 0x00010001\ns_mov_b32 s%d, 0x00010001" % (sMc0, sMc0 + 1))
    A("s_mov_b32 s%d, 0x00ff00ff\ns_mov_b32 s%d, 0x00ff00ff" % (sMlo, sMlo + 1))
    A("s_mov_b32 s%d, 0xff00ff00\ns_mov_b32 s%d, 0xff00ff00" % (sMhi, sMhi + 1))
    c1 = (128 ** -0.5) * math.log2(math.e)
    import struct
    fb = lambda f: struct.unpack("<I", struct.pack("<f", f))[0]
    A("s_mov_b32 s%d, 0x%08x" % (sC1, fb(c1)))
    A("s_mov_b32 s%d, 0x3f80\ns_mov_b32 s%d, 0x3f800000" % (sOne, sOneHi))
    A("s_mov_b32 s%d, %d" % (sBud, cfg.budget))
    A("s_mov_b32 s%d, 0" % sLay)
    A("s_lshl_b32 s%d, s2, 13" % sSlot)
    A("s_lshl_b32 s%d, s%d, 13" % (sGb, sH))
    A("s_lshl_b32 s%d, s%d, 18" % (sRb, sS))
    A("s_lshl_b32 s%d, s%d, 22\ns_lshl_b32 s%d, s%d, 19\ns_add_u32 s%d, s%d, s%d" % (sKV, sH, sT0, sS, sKV, sKV, sT0))
    A("s_lshl_b32 s%d, s%d, 12\ns_add_u32 s%d, s%d, s%d" % (sT0, sWv, sKV, sKV, sT0))
    A("s_mul_i32 s%d, s%d, 43\ns_add_u32 s%d, s%d, 43\ns_lshr_b32 s%d, s%d, 3\ns_lshr_b32 s%d, s%d, 3" % (sT0, sH, sT1, sT0, sT0, sT0, sT1, sT1))
    A("s_sub_u32 s%d, s%d, s%d\ns_lshl_b32 s%d, s%d, 3\ns_lshl_b32 s%d, s%d, 3" % (sNown, sT1, sT0, sNown, sNown, sF0, sT0))
    A("s_lshl_b32 s%d, s%d, 6\ns_lshl_b32 s%d, s%d, 4\ns_add_u32 s%d, s%d, s%d" % (sT0, sS, sT1, sWv, sT0, sT0, sT1))
    A("s_lshl_b32 s%d, s%d, 13\ns_lshl_b32 s%d, s%d, 8\ns_add_u32 s%d, s%d, s%d" % (sWqo, sT0, sT1, sH, sWqo, sWqo, sT1))
    A("s_mul_i32 s%d, s%d, 2752\ns_lshl_b32 s%d, s%d, 1\ns_add_u32 s%d, s%d, s%d" % (sGuo, sT0, sT1, sF0, sGuo, sGuo, sT1))
    A("s_lshl_b32 s%d, s%d, 17\ns_lshl_b32 s%d, s%d, 15\ns_add_u32 s%d, s%d, s%d\ns_lshl_b32 s%d, s%d, 7\ns_add_u32 s%d, s%d, s%d" %
      (sWoo, sH, sT1, sWv, sWoo, sWoo, sT1, sT1, sS, sWoo, sWoo, sT1))
    A("s_lshl_b32 s%d, s%d, 2\ns_add_u32 s%d, s%d, s%d\ns_lshl_b32 s%d, s%d, 10\ns_lshl_b32 s%d, s%d, 7\ns_add_u32 s%d, s%d, s%d" %
      (sDno, sWv, sDno, sDno, sF0, sDno, sDno, sT1, sS, sDno, sDno, sT1))

    vg, vc = vT0, vT1
    A("v_lshrrev_b32 v%d, 4, v%d\nv_and_b32 v%d, 15, v%d" % (vg, vLane, vc, vLane))
    A("v_lshlrev_b32 v%d, 9, v%d\nv_lshl_add_u32 v%d, v%d, 4, v%d" % (vVoff, vg, vVoff, vc, vVoff))
    A("s_mul_i32 s%d, s%d, %d\ns_add_u32 s%d, s%d, %d" % (sT1, sWv, 9 * 4096, sT1, sT1, LDS_TILES))
    A("v_lshlrev_b32 v%d, 4, v%d\nv_add_u32 v%d, s%d, v%d" % (vTile, vLane, vTile, sT1, vTile))
    A("s_lshl_b32 s%d, s%d, 11" % (sT1, sWv))
    A("v_lshlrev_b32 v%d, 4, v%d\nv_add_u32 v%d, s%d, v%d" % (vPw, vg, vPw, sT1, vPw))
    A("s_lshl_b32 s%d, s%d, 6" % (sT1, sWv))
    A("v_lshlrev_b32 v%d, 13, v%d\nv_lshl_add_u32 v%d, v%d, 2, v%d\nv_add_u32 v%d, s%d, v%d" % (vRoff, vg, vRoff, vc, vRoff, vRoff, sT1, vRoff))

    stamp("start")
    pz = vS
    l0 = newlab()
    A("s_cmp_lg_u32 s%d, 0\ns_cbranch_scc1 %s" % (sWv, l0))
    for i in range(4):
        A("v_mov_b32 v%d, -1" % (pz + i))
    A("v_lshlrev_b32 v%d, 4, v0" % vT2)
    for i in range(8):
        A("s_add_u32 s%d, s%d, %d" % (sT1, sSlot, (i >> 2) * 4096))
        A("buffer_store_dwordx4 %s, v%d, %s, s%d offen offset:%d sc1" % (V(pz, 4), vT2, SR(sWS), sT1, (i & 3) * 1024))
    A("s_waitcnt vmcnt(0)")
    A("v_mov_b32 v%d, 1\ns_mov_b64 exec, 1" % vT2)
    A("buffer_atomic_add v%d, off, %s, 0 sc1" % (vT2, SR(sDbg)))
    A("s_mov_b64 exec, -1")
    A(l0 + ":")
    A("v_lshlrev_b32 v%d, 3, v%d" % (vT2, vg))
    A("s_lshl_b32 s%d, s%d, 1" % (sT1, sT0))
    A("buffer_load_dwordx2 %s, v%d, %s, s%d offen" % (V(vD, 2), vT2, SR(sXi), sT1))

    def wq_voff(dst):
        A("v_lshrrev_b32 v%d, 4, v%d\nv_lshlrev_b32 v%d, 15, v%d\nv_and_b32 v%d, 15, v%d\nv_lshl_add_u32 v%d, v%d, 4, v%d" %
          (dst, vLane, dst, dst, vT2, vLane, dst, vT2, dst))
    def wq_load(n, voff):
        A("s_add_u32 s%d, s%d, %d" % (sT1, sWqo, n * 8192))
        A("buffer_load_dwordx4 %s, v%d, %s, s%d offen" % (V(vB + 32 + 4 * n, 4), voff, SR(sWQ), sT1))
    wq_voff(vD + 2)
    for n in range(4):
        wq_load(n, vD + 2)

    vKoff = vD + 3
    A("v_lshrrev_b32 v%d, 1, v%d\nv_and_b32 v%d, 7, v%d\nv_lshlrev_b32 v%d, 8, v%d" % (vKoff, vLane, vKoff, vKoff, vKoff, vKoff))
    A("v_lshrrev_b32 v%d, 4, v%d\nv_lshl_add_u32 v%d, v%d, 5, v%d" % (vT2, vLane, vKoff, vT2, vKoff))
    A("v_and_b32 v%d, 1, v%d\nv_lshl_add_u32 v%d, v%d, 4, v%d" % (vT2, vLane, vKoff, vT2, vKoff))
    KIMM = [0, 128, 2048, 2176]
    def kreg(t, j):
        if t < NKA:
            return AG(t * 16 + j * 4, 4)
        return V(vK + (t - NKA) * 16 + j * 4, 4)
    def k_load(t):
        A("s_add_u32 s%d, s%d, %d" % (sOff, sKV, t * 16384))
        for j in range(4):
            A("buffer_load_dwordx4 %s, v%d, %s, s%d offen offset:%d%s" % (kreg(t, j), vKoff, SR(sK), sOff, KIMM[j], NTK))
    NB1 = NKA + NKV
    for t in range(NB1):
        k_load(t)
    A("s_waitcnt vmcnt(63)")
    A("v_lshlrev_b32 v%d, 16, v%d\nv_and_b32 v%d, 0xffff0000, v%d" % (vX, vD, vX + 1, vD))
    A("v_lshlrev_b32 v%d, 16, v%d\nv_and_b32 v%d, 0xffff0000, v%d" % (vX + 2, vD + 1, vX + 3, vD + 1))

    def p1_colsum(W, accC):
        for n in range(4):
            for k in range(4):
                w = W + 4 * n + k
                if n == 0:
                    A("v_dot2_f32_bf16 v%d, v%d, s%d, 0" % (accC + 2 * k, w, sOne))
                    A("v_dot2_f32_bf16 v%d, v%d, s%d, 0" % (accC + 2 * k + 1, w, sOneHi))
                else:
                    A("v_dot2_f32_bf16 v%d, v%d, s%d, v%d" % (accC + 2 * k, w, sOne, accC + 2 * k))
                    A("v_dot2_f32_bf16 v%d, v%d, s%d, v%d" % (accC + 2 * k + 1, w, sOneHi, accC + 2 * k + 1))
        red4(accC); red4(accC + 4)
        lds_col_addr(vT0)
        A("ds_write_b32 v%d, v%d offset:512" % (vT0, accC))
        A("ds_write_b32 v%d, v%d offset:528" % (vT0, accC + 4))

    def lds_col_addr(dst):
        A("v_and_b32 v%d, 15, v%d\nv_lshlrev_b32 v%d, 5, v%d\nv_lshrrev_b32 v%d, 4, v%d\nv_lshl_add_u32 v%d, v%d, 2, v%d" %
          (dst, vLane, dst, dst, vT2, vLane, dst, vT2, dst))
        A("s_lshl_b32 s%d, s%d, 11\nv_add_u32 v%d, s%d, v%d" % (sT1, sWv, dst, sT1, dst))

    def p1_gemv(W, xoff, kind):
        accA, xm = TMP, TMP + 8
        A("v_lshrrev_b32 v%d, 4, v%d\nv_lshlrev_b32 v%d, 4, v%d" % (vT0, vLane, vT0, vT0))
        A("s_lshl_b32 s%d, s%d, 6\ns_add_u32 s%d, s%d, s%d\ns_add_u32 s%d, s%d, s%d" % (sT1, sWv, sT1, sT1, sSlot, sT1, sT1, sLay))
        A("s_mov_b64 exec, s[%d:%d]" % (sMc0, sMc0 + 1))
        A("buffer_store_dwordx4 %s, v%d, %s, s%d offen offset:%d sc1" % (V(vX, 4), vT0, SR(sWS), sT1, xoff))
        A("s_mov_b64 exec, -1")
        for n in range(4):
            A("v_cvt_pk_bf16_f32 v%d, v%d, 0" % (xm + 2 * n, vX + n))
            A("v_and_b32 v%d, 0xffff0000, v%d" % (xm + 2 * n + 1, vX + n))
        for n in range(4):
            for k in range(4):
                w = W + 4 * n + k
                c0 = "0" if n == 0 else "v%d" % (accA + 2 * k)
                c1_ = "0" if n == 0 else "v%d" % (accA + 2 * k + 1)
                A("v_dot2_f32_bf16 v%d, v%d, v%d, %s" % (accA + 2 * k, w, xm + 2 * n, c0))
                A("v_dot2_f32_bf16 v%d, v%d, v%d, %s" % (accA + 2 * k + 1, w, xm + 2 * n + 1, c1_))
        red4(accA); red4(accA + 4)
        lds_col_addr(vT0)
        A("ds_write_b32 v%d, v%d" % (vT0, accA))
        A("ds_write_b32 v%d, v%d offset:16" % (vT0, accA + 4))
        A("s_waitcnt lgkmcnt(0)\ns_barrier")
        skip = newlab()
        r = TMP
        A("s_add_u32 s%d, s%d, s%d" % (sT1, sSlot, sLay))
        if kind == "q":
            A("s_cmp_ge_u32 s%d, 2\ns_cbranch_scc1 %s" % (sWv, skip))
            A("v_lshlrev_b32 v%d, 2, v0" % vT0)
            for w in range(4):
                A("ds_read_b32 v%d, v%d offset:%d" % (r + w, vT0, w * 2048))
                A("ds_read_b32 v%d, v%d offset:%d" % (r + 4 + w, vT0, w * 2048 + 512))
            A("v_lshlrev_b32 v%d, 3, v0" % vT0)
            A("s_waitcnt lgkmcnt(0)")
            A("v_add_f32 v%d, v%d, v%d\nv_add_f32 v%d, v%d, v%d\nv_add_f32 v%d, v%d, v%d" % (r, r, r + 1, r + 2, r + 2, r + 3, r + 8, r, r + 2))
            A("v_add_f32 v%d, v%d, v%d\nv_add_f32 v%d, v%d, v%d\nv_add_f32 v%d, v%d, v%d" % (r + 4, r + 4, r + 5, r + 6, r + 6, r + 7, r + 9, r + 4, r + 6))
            A("buffer_store_dwordx2 %s, v%d, %s, s%d offen offset:%d sc1" % (V(r + 8, 2), vT0, SR(sWS), sT1, QP))
        else:
            A("s_cmp_ge_u32 s%d, 1\ns_cbranch_scc1 %s" % (sWv, skip))
            A("v_lshlrev_b32 v%d, 2, v0" % vT0)
            offs = [0, 256, 512, 768]
            for qn in range(4):
                for w in range(4):
                    A("ds_read_b32 v%d, v%d offset:%d" % (r + 4 * qn + w, vT0, w * 2048 + offs[qn]))
            A("v_lshlrev_b32 v%d, 4, v0" % vT0)
            A("s_waitcnt lgkmcnt(0)")
            for qn in range(4):
                b = r + 4 * qn
                A("v_add_f32 v%d, v%d, v%d\nv_add_f32 v%d, v%d, v%d\nv_add_f32 v%d, v%d, v%d" % (b, b, b + 1, b + 2, b + 2, b + 3, r + 16 + qn, b, b + 2))
            A("buffer_store_dwordx4 %s, v%d, %s, s%d offen offset:%d sc1" % (V(r + 16, 4), vT0, SR(sWS), sT1, GUP))
        A(skip + ":")

    p1_colsum(vB + 32, TMP + 16)
    A("s_barrier")
    p1_gemv(vB + 32, QX, "q")
    stamp("p1q_done")

    for t in range(NB1, NKA + NKV):
        k_load(t)
    vCnt = vD + 4
    A("buffer_load_dword v%d, off, %s, 0 sc1" % (vCnt, SR(sDbg)))
    def lds_base_s(dst, tile_slot):
        A("s_mul_i32 s%d, s%d, %d\ns_add_u32 s%d, s%d, %d" % (dst, sWv, 9 * 4096, dst, dst, LDS_TILES + tile_slot * 4096))
    lds_base_s(sM0, 0)
    for i in range(NKL):
        t = NKA + NKV + i
        for j in range(4):
            A("s_add_u32 s%d, s%d, %d" % (sOff, sKV, t * 16384 + KIMM[j]))
            A("s_add_u32 m0, s%d, %d" % (sM0, i * 4096 + j * 1024))
            A("s_nop 0")
            A("buffer_load_dwordx4 v%d, %s, s%d offen%s lds" % (vKoff, SR(sK), sOff, NTK))
    A("s_waitcnt vmcnt(%d)" % (NKL * 4))
    lc, lcd = newlab("CNT"), newlab("CNTD")
    A("v_cmp_gt_u32 vcc, 256, v%d" % vCnt)
    A("s_cbranch_vccz %s" % lcd)
    A(lc + ":")
    A("buffer_load_dword v%d, off, %s, 0 sc1" % (vCnt, SR(sDbg)))
    A("s_waitcnt vmcnt(0)")
    A("v_cmp_gt_u32 vcc, 256, v%d" % vCnt)
    A("s_cbranch_vccz %s" % lcd)
    A("s_cmp_eq_u32 s%d, 0\ns_cbranch_scc1 %s\ns_sub_u32 s%d, s%d, 1\ns_branch %s" % (sBud, lcd, sBud, sBud, lc))
    A(lcd + ":")

    gq_regs_ac = TMP
    gq_regs_x = TMP + 16
    def x_loads(xoff, dst):
        A("v_lshrrev_b32 v%d, 3, v%d\nv_lshlrev_b32 v%d, 18, v%d\nv_and_b32 v%d, 7, v%d\nv_lshl_add_u32 v%d, v%d, 5, v%d" %
          (vT1, vLane, vT1, vT1, vT2, vLane, vT1, vT2, vT1))
        A("s_add_u32 s%d, s%d, s%d" % (sT0, sGb, sLay))
        A("buffer_load_dwordx4 %s, v%d, %s, s%d offen offset:%d sc1" % (V(dst, 4), vT1, SR(sWS), sT0, xoff))
        A("buffer_load_dwordx4 %s, v%d, %s, s%d offen offset:%d sc1" % (V(dst + 4, 4), vT1, SR(sWS), sT0, xoff + 16))
    def gq_loads():
        x_loads(QX, gq_regs_x)
        A("v_lshlrev_b32 v%d, 3, v0" % vT0)
        for p in range(8):
            A("s_add_u32 s%d, s%d, %d" % (sT1, sT0, p * 262144))
            A("buffer_load_dwordx2 %s, v%d, %s, s%d offen offset:%d sc1" % (V(gq_regs_ac + 2 * p, 2), vT0, SR(sWS), sT1, QP))
    def stats(xr):
        m, t = vT0, vT2
        A("v_add_f32 v%d, v%d, v%d" % (m, xr, xr + 1))
        for i in range(2, 8):
            A("v_add_f32 v%d, v%d, v%d" % (m, m, xr + i))
        wave_red("add", m, t)
        A("v_mul_f32 v%d, 0x%08x, v%d" % (m, fb(1.0 / 512), m))
        for i in range(8):
            A("v_sub_f32 v%d, v%d, v%d" % (xr + i, xr + i, m))
        A("v_mul_f32 v%d, v%d, v%d" % (vT1, xr, xr))
        for i in range(1, 8):
            A("v_fmac_f32 v%d, v%d, v%d" % (vT1, xr + i, xr + i))
        wave_red("add", vT1, t)
        A("v_mov_b32 v%d, 0x%08x" % (t, fb(1e-5)))
        A("v_fmac_f32 v%d, 0x%08x, v%d" % (t, fb(1.0 / 512), vT1))
        A("v_rsq_f32 v%d, v%d" % (vT1, t))
        A("s_nop 0")
    def gq_finish():
        stats(gq_regs_x)
        r = gq_regs_ac
        for p in range(1, 8):
            A("v_add_f32 v%d, v%d, v%d\nv_add_f32 v%d, v%d, v%d" % (r, r, r + 2 * p, r + 1, r + 1, r + 2 * p + 1))
        A("v_fma_f32 v%d, -v%d, v%d, v%d" % (r, vT0, r + 1, r))
        A("v_mul_f32 v%d, v%d, v%d" % (r, r, vT1))
        A("v_cvt_pk_bf16_f32 v%d, v%d, v%d" % (r, r, r))
        A("v_lshlrev_b32 v%d, 1, v0" % vT0)
        A("ds_write_b16 v%d, v%d offset:%d" % (vT0, r, LDS_Q))
    def q_frags():
        A("s_waitcnt lgkmcnt(0)\ns_barrier")
        A("v_lshrrev_b32 v%d, 4, v%d\nv_lshlrev_b32 v%d, 5, v%d\nv_and_b32 v%d, 1, v%d\nv_lshl_add_u32 v%d, v%d, 4, v%d" %
          (vT0, vLane, vT0, vT0, vT1, vLane, vT0, vT1, vT0))
        A("ds_read_b128 %s, v%d offset:%d" % (V(vQ, 4), vT0, LDS_Q))
        A("ds_read_b128 %s, v%d offset:%d" % (V(vQ + 4, 4), vT0, LDS_Q + 128))

    VIMM = [0, 256, 2048, 2304]
    def v_load(buf, n, soff):
        A("buffer_load_dwordx4 %s, v%d, %s, s%d offen offset:%d%s" % (V(vB + 16 * buf + 4 * n, 4), vVoff, SR(sV), soff, VIMM[n], NTV))

    sk1, sk2 = newlab(), newlab()
    A("s_cmp_ge_u32 s%d, 2\ns_cbranch_scc1 %s" % (sWv, sk1))
    gq_loads()
    A(sk1 + ":")
    for i in range(NVL):
        for n in range(4):
            A("s_add_u32 s%d, s%d, %d" % (sOff, sKV, i * 16384 + VIMM[n]))
            A("s_add_u32 m0, s%d, %d" % (sM0, (NKL + i) * 4096 + n * 1024))
            A("s_nop 0")
            A("buffer_load_dwordx4 v%d, %s, s%d offen%s lds" % (vVoff, SR(sV), sOff, NTV))
    for b in range(2):
        A("s_add_u32 s%d, s%d, %d" % (sOff, sKV, (NVL + b) * 16384))
        for n in range(4):
            v_load(b, n, sOff)
    A("s_cmp_ge_u32 s%d, 2\ns_cbranch_scc1 %s" % (sWv, sk2))
    poll(gq_loads, list(range(TMP, TMP + 24)), vT2, first_wait=NVL * 4 + 8)
    gq_finish()
    A(sk2 + ":")
    A("s_waitcnt vmcnt(%d)" % (NVL * 4 + 8))
    stamp("k_landed")

    A("L_PASS:")
    q_frags()
    stamp("q_ready")
    seq = []
    ri = 0
    for i in range(NKL):
        seq.append(("ldsread", i))
        for _ in range(3):
            seq.append(("reg", ri)); ri += 1
        seq.append(("lds", i))
    while ri < NKA + NKV:
        seq.append(("reg", ri)); ri += 1
    KT = vB + 32
    A("s_waitcnt lgkmcnt(0)")
    prev = None
    cnt = 0
    def post_a(dset, sset):
        d = vD + 8 * dset
        s = vS + 4 * sset
        return ["v_cndmask_b32_e64 v%d, v%d, v%d, s[%d:%d]" % (vS + 8, d + 1, d + 0, sMev, sMev + 1),
                "v_cndmask_b32_e64 v%d, v%d, v%d, s[%d:%d]" % (vS + 9, d + 3, d + 2, sMev, sMev + 1)], \
               ["v_add_f32_dpp v%d, v%d, v%d quad_perm:[1,0,3,2] row_mask:0xf bank_mask:0xf" % (s + 0, vS + 8, vS + 8),
                "v_add_f32_dpp v%d, v%d, v%d quad_perm:[1,0,3,2] row_mask:0xf bank_mask:0xf" % (s + 1, vS + 9, vS + 9)], \
               ["v_cndmask_b32_e64 v%d, v%d, v%d, s[%d:%d]" % (vS + 10, d + 5, d + 4, sMev, sMev + 1),
                "v_cndmask_b32_e64 v%d, v%d, v%d, s[%d:%d]" % (vS + 11, d + 7, d + 6, sMev, sMev + 1)], \
               ["v_add_f32_dpp v%d, v%d, v%d quad_perm:[1,0,3,2] row_mask:0xf bank_mask:0xf" % (s + 2, vS + 10, vS + 10),
                "v_add_f32_dpp v%d, v%d, v%d quad_perm:[1,0,3,2] row_mask:0xf bank_mask:0xf" % (s + 3, vS + 11, vS + 11)]
    def post_write(sset, tile):
        A("s_mov_b64 exec, s[%d:%d]" % (sMc0, sMc0 + 1))
        A("ds_write_b128 v%d, %s offset:%d" % (vPw, V(vS + 4 * sset, 4), tile * 64))
        A("s_mov_b64 exec, -1")
    for kind, idx in seq:
        if kind == "ldsread":
            for j in range(4):
                A("ds_read_b128 %s, v%d offset:%d" % (V(KT + 4 * j, 4), vTile, idx * 4096 + j * 1024))
            continue
        if kind == "reg":
            tile = idx
            ops = [kreg(idx, j) for j in range(4)]
        else:
            tile = NKA + NKV + idx
            ops = [V(KT + 4 * j, 4) for j in range(4)]
            A("s_waitcnt lgkmcnt(0)")
        dset = cnt % 2
        d0, d1 = V(vD + 8 * dset, 4), V(vD + 8 * dset + 4, 4)
        mf = ["v_mfma_f32_16x16x32_bf16 %s, %s, %s, 0" % (d0, ops[0], V(vQ, 4)),
              "v_mfma_f32_16x16x32_bf16 %s, %s, %s, %s" % (d0, ops[1], V(vQ + 4, 4), d0),
              "v_mfma_f32_16x16x32_bf16 %s, %s, %s, 0" % (d1, ops[2], V(vQ, 4)),
              "v_mfma_f32_16x16x32_bf16 %s, %s, %s, %s" % (d1, ops[3], V(vQ + 4, 4), d1)]
        if prev is None:
            for m in mf: A(m)
        else:
            pa = post_a(prev[0], prev[0])
            if cnt == 1:
                A("s_nop 7")
            for m, p in zip(mf, pa):
                A(m)
                for x in p: A(x)
            post_write(prev[0], prev[1])
        prev = (dset, tile)
        cnt += 1
    A("s_nop 7\ns_nop 3")
    pa = post_a(prev[0], prev[0])
    for x in pa[0] + pa[2]: A(x)
    A("s_nop 1")
    for x in pa[1] + pa[3]: A(x)
    post_write(prev[0], prev[1])
    stamp("prepass")
    A("s_add_u32 s%d, s%d, %d" % (sOff, sKV, (NVL + 2) * 16384))
    for n in range(4):
        v_load(2, n, sOff)
    e = vD
    A("s_lshl_b32 s%d, s%d, 11" % (sT1, sWv))
    A("v_lshlrev_b32 v%d, 5, v%d\nv_add_u32 v%d, s%d, v%d" % (vT0, vLane, vT0, sT1, vT0))
    A("s_waitcnt lgkmcnt(0)")
    A("ds_read_b128 %s, v%d" % (V(e, 4), vT0))
    A("ds_read_b128 %s, v%d offset:16" % (V(e + 4, 4), vT0))
    A("s_waitcnt lgkmcnt(0)")
    A("v_max3_f32 v%d, v%d, v%d, v%d" % (vM, e, e + 1, e + 2))
    A("v_max3_f32 v%d, v%d, v%d, v%d" % (vM, vM, e + 3, e + 4))
    A("v_max3_f32 v%d, v%d, v%d, v%d" % (vM, vM, e + 5, e + 6))
    A("v_max_f32 v%d, v%d, v%d" % (vM, vM, e + 7))
    wave_red("max", vM, vT1)
    A("v_mul_f32 v%d, s%d, v%d" % (vM, sC1, vM))
    for i in range(8):
        A("v_fma_f32 v%d, v%d, s%d, -v%d" % (e + i, e + i, sC1, vM))
    for i in range(8):
        A("v_exp_f32 v%d, v%d" % (e + i, e + i))
    A("s_nop 0")
    A("v_add_f32 v%d, v%d, v%d" % (vLs, e, e + 1))
    for i in range(2, 8):
        A("v_add_f32 v%d, v%d, v%d" % (vLs, vLs, e + i))
    for i in range(8):
        A("v_cvt_pk_bf16_f32 v%d, v%d, 0" % (e + i, e + i))
    A("ds_write_b128 v%d, %s" % (vT0, V(e, 4)))
    A("ds_write_b128 v%d, %s offset:16" % (vT0, V(e + 4, 4)))
    for i in range(8):
        A("v_mov_b32 v%d, 0" % (vAcc + i))
    wave_red("add", vLs, vT1)
    A("s_waitcnt lgkmcnt(0)")
    stamp("p_ready")
    def p_read(pset, addr, off):
        A("ds_read_b128 %s, v%d offset:%d" % (V(vS + 8 * pset, 4), addr, off))
    def p_shift(pset):
        for n in range(4):
            A("v_lshlrev_b32 v%d, 16, v%d" % (vS + 8 * pset + 4 + n, vS + 8 * pset + n))
    def dots(src, pset, n):
        for k in range(4):
            A("v_dot2c_f32_bf16 v%d, v%d, v%d" % (vAcc + 2 * k, src + k, vS + 8 * pset + n))
            A("v_dot2c_f32_bf16 v%d, v%d, v%d" % (vAcc + 2 * k + 1, src + k, vS + 8 * pset + 4 + n))
    A("s_waitcnt vmcnt(12)")
    p_read(0, vPw, 0)
    for n in range(4):
        A("ds_read_b128 %s, v%d offset:%d" % (V(vD + 4 * n, 4), vTile, (NKL + 0) * 4096 + n * 1024))
    p_read(1, vPw, 64)
    A("s_waitcnt lgkmcnt(1)")
    p_shift(0)
    for n in range(4):
        dots(vD + 4 * n, 0, n)
        A("ds_read_b128 %s, v%d offset:%d" % (V(vD + 4 * n, 4), vTile, (NKL + 1) * 4096 + n * 1024))
    p_read(0, vPw, 128)
    A("s_waitcnt lgkmcnt(1)")
    p_shift(1)
    for n in range(4):
        dots(vD + 4 * n, 1, n)
    def pbase(b):
        return [vS, vS + 8, vD + 8][b]
    def p_read3(b, off):
        A("ds_read_b128 %s, v%d offset:%d" % (V(pbase(b), 4), vPa, off))
    def p_shift3(b):
        for n in range(4):
            A("v_lshlrev_b32 v%d, 16, v%d" % (pbase(b) + 4 + n, pbase(b) + n))
    def dots3(b, n):
        src = vB + 16 * b + 4 * n
        for k in range(4):
            A("v_dot2c_f32_bf16 v%d, v%d, v%d" % (vAcc + 2 * k, src + k, pbase(b) + n))
            A("v_dot2c_f32_bf16 v%d, v%d, v%d" % (vAcc + 2 * k + 1, src + k, pbase(b) + 4 + n))
    A("v_add_u32 v%d, %d, v%d" % (vPa, NVL * 64, vPw))
    A("s_add_u32 s%d, s%d, %d" % (sOff, sKV, (NVL + 3) * 16384))
    A("s_mov_b32 s%d, 0" % sCnt)
    A("L_VLOOP:")
    for b in range(3):
        p_read3((b + 1) % 3, (b + 1) * 64)
        A("s_waitcnt lgkmcnt(1)")
        p_shift3(b)
        for n in range(4):
            A("s_waitcnt vmcnt(11)")
            dots3(b, n)
            v_load(b, n, sOff)
        A("s_add_u32 s%d, s%d, 16384" % (sOff, sOff))
    A("v_add_u32 v%d, 192, v%d" % (vPa, vPa))
    A("s_add_u32 s%d, s%d, 1\ns_cmp_lt_u32 s%d, 9\ns_cbranch_scc1 L_VLOOP" % (sCnt, sCnt, sCnt))
    vWo = vT0
    A("v_lshrrev_b32 v%d, 4, v%d\nv_lshlrev_b32 v%d, 10, v%d\nv_and_b32 v%d, 15, v%d\nv_lshl_add_u32 v%d, v%d, 3, v%d" %
      (vWo, vLane, vWo, vWo, vT2, vLane, vWo, vT2, vWo))
    vGu = vT1
    A("v_lshrrev_b32 v%d, 4, v%d\nv_mul_u32_u24 v%d, %d, v%d\nv_and_b32 v%d, 7, v%d\nv_min_u32 v%d, 5, v%d\nv_lshl_add_u32 v%d, v%d, 4, v%d" %
      (vGu, vLane, vGu, 4 * 2752, vGu, vT2, vLane, vT2, vT2, vGu, vT2, vGu))
    vWq = vQ
    wq_voff(vWq)
    W = 0
    for n in range(3):
        A("s_add_u32 s%d, s%d, %d" % (sT1, sDno, n * 16384))
        A("buffer_load_dwordx2 %s, v%d, %s, s%d offen" % (V(vD + 2 * n, 2), vWo, SR(sWD), sT1))
        W += 1
    for b in range(3):
        if b < 2:
            p_read3(b + 1, (b + 1) * 64)
            A("s_waitcnt lgkmcnt(1)")
        else:
            A("s_waitcnt lgkmcnt(0)")
        p_shift3(b)
        for n in range(4):
            k = 4 * b + n
            A("s_waitcnt vmcnt(%d)" % (11 - k + W))
            dots3(b, n)
            if b == 0:
                for m in (2 * n, 2 * n + 1):
                    A("s_add_u32 s%d, s%d, %d" % (sT1, sWoo, m * 4096))
                    A("buffer_load_dwordx2 %s, v%d, %s, s%d offen" % (V(vB + 2 * m, 2), vWo, SR(sWO), sT1))
                    W += 1
            elif b == 1:
                A("s_add_u32 s%d, s%d, %d" % (sT1, sGuo, n * 2752))
                A("s_mov_b64 exec, s[%d:%d]" % (sMlo, sMlo + 1))
                A("buffer_load_dwordx4 %s, v%d, %s, s%d offen" % (V(vB + 16 + 4 * n, 4), vGu, SR(sWG), sT1))
                A("s_mov_b64 exec, s[%d:%d]" % (sMhi, sMhi + 1))
                A("buffer_load_dwordx4 %s, v%d, %s, s%d offen" % (V(vB + 16 + 4 * n, 4), vGu, SR(sWU), sT1))
                A("s_mov_b64 exec, -1")
                W += 2
            else:
                wq_load(n, vWq)
                W += 1
    stamp("v_done")
    red4(vAcc); red4(vAcc + 4)
    lds_col_addr(vT0)
    A("ds_write_b32 v%d, v%d" % (vT0, vAcc))
    A("ds_write_b32 v%d, v%d offset:16" % (vT0, vAcc + 4))
    A("v_mov_b32 v%d, v%d\nv_mov_b32 v%d, v%d" % (vS, vM, vS + 1, vLs))
    A("s_lshl_b32 s%d, s%d, 11\nv_mov_b32 v%d, s%d" % (sT1, sWv, vT0, sT1))
    A("s_mov_b64 exec, 1")
    A("ds_write_b64 v%d, %s offset:1536" % (vT0, V(vS, 2)))
    A("s_mov_b64 exec, -1")
    A("s_waitcnt lgkmcnt(0)\ns_barrier")
    sk = newlab()
    A("s_cmp_ge_u32 s%d, 2\ns_cbranch_scc1 %s" % (sWv, sk))
    r = TMP
    A("v_lshlrev_b32 v%d, 2, v0\nv_mov_b32 v%d, 0" % (vT0, vT1))
    for w in range(4):
        A("ds_read_b32 v%d, v%d offset:%d" % (r + w, vT0, w * 2048))
        A("ds_read_b64 %s, v%d offset:%d" % (V(r + 4 + 2 * w, 2), vT1, w * 2048 + 1536))
    A("s_waitcnt lgkmcnt(0)")
    Mx = r + 12
    A("v_max3_f32 v%d, v%d, v%d, v%d\nv_max_f32 v%d, v%d, v%d" % (Mx, r + 4, r + 6, r + 8, Mx, Mx, r + 10))
    for w in range(4):
        A("v_sub_f32 v%d, v%d, v%d" % (r + 4 + 2 * w, r + 4 + 2 * w, Mx))
    for w in range(4):
        A("v_exp_f32 v%d, v%d" % (r + 4 + 2 * w, r + 4 + 2 * w))
    A("s_nop 0")
    A("v_mul_f32 v%d, v%d, v%d\nv_mul_f32 v%d, v%d, v%d" % (r + 14, r, r + 4, Mx + 1, r + 5, r + 4))
    for w in range(1, 4):
        A("v_fmac_f32 v%d, v%d, v%d\nv_fmac_f32 v%d, v%d, v%d" % (r + 14, r + w, r + 4 + 2 * w, Mx + 1, r + 5 + 2 * w, r + 4 + 2 * w))
    A("s_add_u32 s%d, s%d, s%d" % (sT1, sSlot, sLay))
    A("buffer_store_dword v%d, v%d, %s, s%d offen offset:%d sc1" % (r + 14, vT0, SR(sWS), sT1, OP))
    sk3 = newlab()
    A("s_cmp_lg_u32 s%d, 0\ns_cbranch_scc1 %s" % (sWv, sk3))
    A("s_mov_b64 exec, 1")
    A("buffer_store_dwordx2 %s, off, %s, s%d offset:%d sc1" % (V(Mx, 2), SR(sWS), sT1, ML))
    A("s_mov_b64 exec, -1")
    A(sk3 + ":")
    stamp("o_pub")
    ro, rml = TMP, TMP + 8
    def go_loads():
        A("v_lshlrev_b32 v%d, 2, v0" % vT0)
        A("s_add_u32 s%d, s%d, s%d" % (sT0, sGb, sLay))
        for p in range(8):
            A("s_add_u32 s%d, s%d, %d" % (sT1, sT0, p * 262144))
            A("buffer_load_dword v%d, v%d, %s, s%d offen offset:%d sc1" % (ro + p, vT0, SR(sWS), sT1, OP))
            A("buffer_load_dwordx2 %s, off, %s, s%d offset:%d sc1" % (V(rml + 2 * p, 2), SR(sWS), sT1, ML))
    poll(go_loads, list(range(TMP, TMP + 24)), vT2)
    Mx = TMP + 24
    A("v_max3_f32 v%d, v%d, v%d, v%d" % (Mx, rml, rml + 2, rml + 4))
    A("v_max3_f32 v%d, v%d, v%d, v%d" % (Mx, Mx, rml + 6, rml + 8))
    A("v_max3_f32 v%d, v%d, v%d, v%d" % (Mx, Mx, rml + 10, rml + 12))
    A("v_max_f32 v%d, v%d, v%d" % (Mx, Mx, rml + 14))
    for p in range(8):
        A("v_sub_f32 v%d, v%d, v%d" % (rml + 2 * p, rml + 2 * p, Mx))
    for p in range(8):
        A("v_exp_f32 v%d, v%d" % (rml + 2 * p, rml + 2 * p))
    A("s_nop 0")
    oo, ll = Mx + 1, Mx + 2
    A("v_mul_f32 v%d, v%d, v%d\nv_mul_f32 v%d, v%d, v%d" % (oo, ro, rml, ll, rml + 1, rml))
    for p in range(1, 8):
        A("v_fmac_f32 v%d, v%d, v%d\nv_fmac_f32 v%d, v%d, v%d" % (oo, ro + p, rml + 2 * p, ll, rml + 2 * p + 1, rml + 2 * p))
    A("v_rcp_f32 v%d, v%d\ns_nop 0\nv_mul_f32 v%d, v%d, v%d" % (ll, ll, oo, oo, ll))
    A("v_cvt_pk_bf16_f32 v%d, v%d, 0" % (oo, oo))
    A("v_and_b32 v%d, 0x60, v0\nv_and_b32 v%d, 3, v0\nv_lshl_add_u32 v%d, v%d, 3, v%d" % (vT0, vT1, vT0, vT1, vT0))
    A("v_bfe_u32 v%d, v0, 2, 3\nv_add_lshl_u32 v%d, v%d, v%d, 2" % (vT1, vT0, vT0, vT1))
    A("ds_write_b32 v%d, v%d offset:%d" % (vT0, oo, LDS_OM))
    A(sk + ":")
    A("s_waitcnt vmcnt(0) lgkmcnt(0)\ns_barrier")
    stamp("o_ready")

    def p2_gemv(W, nrows, lds_mask, mstride, outoff):
        mk = TMP
        hi = TMP + 8
        acc = TMP + 16
        A("v_lshrrev_b32 v%d, 4, v%d\nv_lshlrev_b32 v%d, %d, v%d" % (vT0, vLane, vT0, int(math.log2(mstride * 4)), vT0))
        A("s_lshl_b32 s%d, s%d, %d\nv_add_u32 v%d, s%d, v%d" % (sT1, sWv, int(math.log2(mstride * 16)), vT0, sT1, vT0))
        A("ds_read_b128 %s, v%d offset:%d" % (V(mk, 4), vT0, lds_mask))
        if nrows > 4:
            A("ds_read_b128 %s, v%d offset:%d" % (V(mk + 4, 4), vT0, lds_mask + 16))
        A("s_waitcnt lgkmcnt(0)")
        for n in range(nrows):
            A("v_lshlrev_b32 v%d, 16, v%d" % (hi + n, mk + n))
        for n in range(nrows):
            for k in range(2):
                w = W + 2 * n + k
                c0 = "0" if n == 0 else "v%d" % (acc + 2 * k)
                c1_ = "0" if n == 0 else "v%d" % (acc + 2 * k + 1)
                A("v_dot2_f32_bf16 v%d, v%d, v%d, %s" % (acc + 2 * k, w, mk + n, c0))
                A("v_dot2_f32_bf16 v%d, v%d, v%d, %s" % (acc + 2 * k + 1, w, hi + n, c1_))
        red4(acc)
        A("v_and_b32 v%d, 15, v%d\nv_lshlrev_b32 v%d, 4, v%d\nv_lshrrev_b32 v%d, 4, v%d\nv_lshl_add_u32 v%d, v%d, 2, v%d" %
          (vT0, vLane, vT0, vT0, vT2, vLane, vT0, vT2, vT0))
        A("s_lshl_b32 s%d, s%d, 11\nv_add_u32 v%d, s%d, v%d" % (sT1, sWv, vT0, sT1, vT0))
        A("ds_write_b32 v%d, v%d offset:1024" % (vT0, acc))
        A("s_waitcnt lgkmcnt(0)\ns_barrier")
        skp = newlab()
        A("s_cmp_ge_u32 s%d, 1\ns_cbranch_scc1 %s" % (sWv, skp))
        A("v_lshlrev_b32 v%d, 2, v0" % vT0)
        for w in range(4):
            A("ds_read_b32 v%d, v%d offset:%d" % (TMP + w, vT0, w * 2048 + 1024))
        A("s_add_u32 s%d, s%d, s%d" % (sT1, sSlot, sLay))
        A("s_waitcnt lgkmcnt(0)")
        A("v_add_f32 v%d, v%d, v%d\nv_add_f32 v%d, v%d, v%d\nv_add_f32 v%d, v%d, v%d" % (TMP, TMP, TMP + 1, TMP + 2, TMP + 2, TMP + 3, TMP, TMP, TMP + 2))
        A("buffer_store_dword v%d, v%d, %s, s%d offen offset:%d sc1" % (TMP, vT0, SR(sWS), sT1, outoff))
        A(skp + ":")

    def v_prefetch(buf):
        skp = newlab()
        A("s_cmp_lg_u32 s%d, 0\ns_cbranch_scc1 %s" % (sLay, skp))
        A("s_add_u32 s%d, s%d, %d" % (sOff, sKV, (NVL + buf) * 16384))
        for n in range(4):
            v_load(buf, n, sOff)
        A(skp + ":")

    def r_stage(off):
        rr = TMP
        def loads():
            A("s_add_u32 s%d, s%d, s%d" % (sT0, sRb, sLay))
            for m in range(8):
                A("s_add_u32 s%d, s%d, %d" % (sT1, sT0, m * 32768))
                A("buffer_load_dword v%d, v%d, %s, s%d offen offset:%d sc1" % (rr + m, vRoff, SR(sWS), sT1, off))
        poll(loads, list(range(rr, rr + 8)), vT2)
        A("v_add_f32 v%d, v%d, v%d\nv_add_f32 v%d, v%d, v%d\nv_add_f32 v%d, v%d, v%d\nv_add_f32 v%d, v%d, v%d" %
          (rr, rr, rr + 1, rr + 2, rr + 2, rr + 3, rr + 4, rr + 4, rr + 5, rr + 6, rr + 6, rr + 7))
        A("v_add_f32 v%d, v%d, v%d\nv_add_f32 v%d, v%d, v%d\nv_add_f32 v%d, v%d, v%d" % (rr, rr, rr + 2, rr + 4, rr + 4, rr + 6, rr, rr, rr + 4))
        A("v_mov_b32 v%d, 1.0" % (rr + 1))
        A("s_nop 1")
        A("v_mfma_f32_16x16x4_f32 %s, v%d, v%d, 0" % (V(rr + 4, 4), rr, rr + 1))
        A("s_nop 7\ns_nop 3")
        for i in range(4):
            rnd_bf16(rr + 4 + i)
            A("v_add_f32 v%d, v%d, v%d" % (vX + i, vX + i, rr + 4 + i))
            rnd_bf16(vX + i)

    p2_gemv(vB, 8, LDS_OM, 8, WOP)
    v_prefetch(0)
    stamp("wo_pub")
    p1_colsum(vB + 16, TMP + 16)
    r_stage(WOP)
    stamp("x1_ready")
    p1_gemv(vB + 16, GUX, "gu")
    v_prefetch(1)
    stamp("gu_pub")
    sk = newlab()
    A("s_cmp_ge_u32 s%d, 1\ns_cbranch_scc1 %s" % (sWv, sk))
    rg = TMP
    rx = vD + 8
    def gg_loads():
        x_loads(GUX, rx)
        A("v_lshlrev_b32 v%d, 4, v0" % vT0)
        for p in range(8):
            A("s_add_u32 s%d, s%d, %d" % (sT1, sT0, p * 262144))
            A("buffer_load_dwordx4 %s, v%d, %s, s%d offen offset:%d sc1" % (V(rg + 4 * p, 4), vT0, SR(sWS), sT1, GUP))
    poll(gg_loads, list(range(rg, rg + 32)) + list(range(rx, rx + 8)), vT2)
    stats(rx)
    for p in range(1, 8):
        for qn in range(4):
            A("v_add_f32 v%d, v%d, v%d" % (rg + qn, rg + qn, rg + 4 * p + qn))
    A("v_fma_f32 v%d, -v%d, v%d, v%d\nv_fma_f32 v%d, -v%d, v%d, v%d" % (rg, vT0, rg + 2, rg, rg + 1, vT0, rg + 3, rg + 1))
    A("v_mul_f32 v%d, v%d, v%d\nv_mul_f32 v%d, v%d, v%d" % (rg, rg, vT1, rg + 1, rg + 1, vT1))
    rnd_bf16(rg); rnd_bf16(rg + 1)
    A("v_mul_f32 v%d, 0x%08x, v%d" % (rg, fb(-math.log2(math.e)), rg))
    A("v_exp_f32 v%d, v%d\ns_nop 0\nv_add_f32 v%d, 1.0, v%d\nv_rcp_f32 v%d, v%d\ns_nop 0" % (rg, rg, rg, rg, rg, rg))
    rnd_bf16(rg)
    A("v_mul_f32 v%d, v%d, v%d" % (rg, rg, rg + 1))
    A("v_cvt_pk_bf16_f32 v%d, v%d, 0" % (rg, rg))
    A("v_cmp_gt_u32 vcc, s%d, v0\ns_nop 1\nv_cndmask_b32 v%d, 0, v%d, vcc" % (sNown, rg, rg))
    A("v_bfe_u32 v%d, v0, 2, 2\nv_lshlrev_b32 v%d, 4, v%d\nv_and_b32 v%d, 3, v0\nv_lshl_add_u32 v%d, v%d, 2, v%d" % (vT0, vT0, vT0, vT1, vT0, vT1, vT0))
    A("v_lshrrev_b32 v%d, 4, v0\nv_add_lshl_u32 v%d, v%d, v%d, 2" % (vT1, vT0, vT0, vT1))
    A("ds_write_b32 v%d, v%d offset:%d" % (vT0, rg, LDS_HM))
    A(sk + ":")
    A("s_waitcnt lgkmcnt(0)\ns_barrier")
    stamp("h_ready")
    p2_gemv(vD, 3, LDS_HM, 4, DNP)
    stamp("dn_pub")
    lfin = newlab("FIN")
    A("s_cmp_lg_u32 s%d, 0\ns_cbranch_scc1 %s" % (sLay, lfin))
    p1_colsum(vB + 32, TMP + 16)
    r_stage(DNP)
    stamp("x2_ready")
    A("s_mov_b32 s%d, 4096" % sLay)
    p1_gemv(vB + 32, QX, "q")
    sk = newlab()
    A("s_cmp_ge_u32 s%d, 2\ns_cbranch_scc1 %s" % (sWv, sk))
    poll(gq_loads, list(range(TMP, TMP + 24)), vT2)
    gq_finish()
    A(sk + ":")
    A("s_branch L_PASS")
    A(lfin + ":")
    A("s_cmp_lg_u32 s%d, 0\ns_cbranch_scc1 L_END" % sH)
    r_stage(DNP)
    A("v_cvt_pk_bf16_f32 v%d, v%d, v%d\nv_cvt_pk_bf16_f32 v%d, v%d, v%d" % (TMP, vX, vX + 1, TMP + 1, vX + 2, vX + 3))
    A("v_lshrrev_b32 v%d, 4, v%d\nv_lshlrev_b32 v%d, 3, v%d" % (vT0, vLane, vT0, vT0))
    A("s_lshl_b32 s%d, s%d, 7\ns_lshl_b32 s%d, s%d, 5\ns_add_u32 s%d, s%d, s%d" % (sT0, sS, sT1, sWv, sT0, sT0, sT1))
    A("s_mov_b64 exec, s[%d:%d]" % (sMc0, sMc0 + 1))
    A("buffer_store_dwordx2 %s, v%d, %s, s%d offen" % (V(TMP, 2), vT0, SR(sOut), sT0))
    A("s_mov_b64 exec, -1")
    stamp("end")
    A("L_END:")
    A("s_endpgm")
    tail = """.section .rodata,"a"
.p2align 6
.amdhsa_kernel %s
  .amdhsa_next_free_vgpr 512
  .amdhsa_next_free_sgpr 102
  .amdhsa_accum_offset 256
  .amdhsa_group_segment_fixed_size 0
  .amdhsa_kernarg_size 96
  .amdhsa_user_sgpr_count 2
  .amdhsa_user_sgpr_kernarg_segment_ptr 1
  .amdhsa_system_sgpr_workgroup_id_x 1
.end_amdhsa_kernel
""" % NAME
    return "\n".join(hdr) + "\n" + "\n".join(L) + "\n" + tail


if __name__ == "__main__":
    import argparse
    ap = argparse.ArgumentParser()
    ap.add_argument("-o", default="interleave_layers__gqa_block_cached__glu_gated_glu__decode.s")
    ap.add_argument("--diag", action="store_true")
    a = ap.parse_args()
    cfg = Cfg()
    cfg.diag = a.diag
    cfg.stamp_names = []
    s = gen(cfg)
    open(a.o, "w").write(s)
    if a.diag:
        open(a.o + ".stamps", "w").write("\n".join(cfg.stamp_names))
    print("wrote", a.o, len(s), "bytes")
```
